```python
import torch

def _softmax(x, axis=-1):
    return torch.softmax(x, dim=axis)
def _gelu(x):
    return torch.nn.functional.gelu(x, approximate="tanh")
def _silu(x):
    return torch.nn.functional.silu(x)
def _sigmoid(x):
    return torch.sigmoid(x)
def _layernorm(x, axis=-1, eps=1e-5):
    m = x.mean(dim=axis, keepdim=True)
    v = x.var(dim=axis, keepdim=True, unbiased=False)
    return (x - m) / torch.sqrt(v + eps)
def _scatter_add(tgt, idx, src, axis=0):
    return tgt.clone().index_add_(axis, idx, src)
def _segment_sum(src, seg, n):
    out = torch.zeros((n,) + src.shape[1:], dtype=src.dtype)
    return out.index_add_(0, seg, src)
def _pad(x, pw):
    flat = tuple(v for pair in reversed(pw) for v in pair)
    return torch.nn.functional.pad(x, flat)

kernel_name = 'interleave_layers__sliding_local_dilated__linear_kernel_hedgehog__prompt'

def setup_inputs():

    _w = (lambda a: (lambda t: t.to(torch.bfloat16) if t.is_floating_point() else t)(torch.as_tensor(a)))
    def _A_setup():
        B, S, D = 1, 2048, 512
        return {
            "x": _w((lambda *s: torch.randn(*s, dtype=torch.bfloat16) * 0.05)(B, S, D)),
            "wqkv": _w((lambda *s: torch.randn(*s, dtype=torch.bfloat16) * 0.05)(D, 3 * D)),
            "wo": _w((lambda *s: torch.randn(*s, dtype=torch.bfloat16) * 0.05)(D, D)),
        }
    _A_in = _A_setup()

    def _B_setup():
        B, S, D, H = 1, 2048, 512, 32
        Dh = D // H
        return {
            "x": _w((lambda *s: torch.randn(*s, dtype=torch.bfloat16) * 0.05)(B, S, D)),
            "wqkv": _w((lambda *s: torch.randn(*s, dtype=torch.bfloat16) * 0.4)(D, 3 * D)),
            "w_phi": _w((lambda *s: torch.randn(*s, dtype=torch.bfloat16) * 0.4)(H, Dh, Dh) * (Dh ** -0.5)),
            "wo": _w((lambda *s: torch.randn(*s, dtype=torch.bfloat16) * 0.1)(D, D)),
        }
    _B_in = _B_setup()

    return {
        "A_x": _A_in["x"],
        "A_wqkv": _A_in["wqkv"],
        "A_wo": _A_in["wo"],
        "B_x": _B_in["x"],
        "B_wqkv": _B_in["wqkv"],
        "B_w_phi": _B_in["w_phi"],
        "B_wo": _B_in["wo"],
    }

def reference(A_x, A_wqkv, A_wo, B_x, B_wqkv, B_w_phi, B_wo):
    def _A_ref(x, wqkv, wo):
        B, S, D = x.shape
        H = 32; Dh = D // H
        W, dil = 8, 2
        qkv = (lambda x, *d: x.permute(*d))((x @ wqkv).reshape(B, S, 3, H, Dh), 2, 0, 3, 1, 4)
        q, k, v = qkv[0], qkv[1], qkv[2]
        scale = Dh ** -0.5
        pos = torch.arange(S)
        off = torch.arange(W) * dil
        idx = pos[:, None] - off[None, :]
        mask = idx >= 0
        idx_c = torch.where(mask, idx, 0).reshape(-1)
        kg = k[:, :, idx_c, :].reshape(B, H, S, W, Dh)
        vg = v[:, :, idx_c, :].reshape(B, H, S, W, Dh)
        logits = torch.einsum("bhsd,bhswd->bhsw", q, kg) * scale
        logits = torch.where(mask[None, None, :, :], logits, -1e9)
        attn = _softmax(logits, axis=-1)
        o = torch.einsum("bhsw,bhswd->bhsd", attn, vg)
        return (lambda x, *d: x.permute(*d))(o, 0, 2, 1, 3).reshape(B, S, D) @ wo

    def _B_ref(x, wqkv, w_phi, wo):
        B, S, D = x.shape
        H = 32; Dh = D // H
        qkv = (lambda x, *d: x.permute(*d))((x @ wqkv).reshape(B, S, 3, H, Dh), 2, 0, 3, 1, 4)
        q, k, v = qkv[0], qkv[1], qkv[2]
        pq = torch.einsum("bhsd,hdf->bhsf", q, w_phi)
        pk = torch.einsum("bhsd,hdf->bhsf", k, w_phi)
        phi_q = torch.concatenate([_softmax(pq, axis=-1), _softmax(-pq, axis=-1)], axis=-1)
        phi_k = torch.concatenate([_softmax(pk, axis=-1), _softmax(-pk, axis=-1)], axis=-1)
        kv = torch.einsum("bhsf,bhsd->bhfd", phi_k, v)
        z  = torch.einsum("bhsf->bhf", phi_k)
        num = torch.einsum("bhqf,bhfd->bhqd", phi_q, kv)
        den = torch.einsum("bhqf,bhf->bhq", phi_q, z)[..., None] + 1e-6
        o = num / den
        return (lambda x, *d: x.permute(*d))(o, 0, 2, 1, 3).reshape(B, S, D) @ wo

    x = A_x
    x = x + _A_ref(_layernorm(x, axis=-1), A_wqkv, A_wo)
    x = x + _B_ref(_layernorm(x, axis=-1), B_wqkv, B_w_phi, B_wo)
    x = x + _A_ref(_layernorm(x, axis=-1), A_wqkv, A_wo)
    x = x + _B_ref(_layernorm(x, axis=-1), B_wqkv, B_w_phi, B_wo)
    return x
```

```python
import re

REG_RE = re.compile(r'^(-|abs\()?([vas])(\d+|\[(\d+):(\d+)\])\)?$')

def regs_of(tok):
    tok = tok.strip()
    if tok in ('vcc',):
        return {('s', 106), ('s', 107)}
    if tok == 'vcc_lo': return {('s', 106)}
    if tok == 'vcc_hi': return {('s', 107)}
    if tok == 'exec': return {('s', 126), ('s', 127)}
    if tok == 'exec_lo': return {('s', 126)}
    if tok == 'exec_hi': return {('s', 127)}
    if tok == 'm0': return {('s', 124)}
    m = REG_RE.match(tok)
    if not m:
        return set()
    k = m.group(2)
    if m.group(4) is not None:
        return {(k, i) for i in range(int(m.group(4)), int(m.group(5)) + 1)}
    return {(k, int(m.group(3)))}

TRANS = ('v_exp_f32', 'v_log_f32', 'v_rcp_f32', 'v_rsq_f32', 'v_sqrt_f32', 'v_sin_f32', 'v_cos_f32')
VCC = {('s', 106), ('s', 107)}
EXEC = {('s', 126), ('s', 127)}
M0 = {('s', 124)}

class I:
    __slots__ = ('text', 'op', 'rd', 'wr', 'kind', 'tag', 'cond', 'srcc', 'srcab', 'cost', 'note', 'dpp', 'data')
    def __init__(self, text, tag=None, cond=False):
        self.text = text
        self.tag = tag
        self.cond = cond
        self.rd = set(); self.wr = set(); self.srcc = set(); self.srcab = set(); self.data = set()
        self.dpp = False
        self.cost = 1
        t = text.split(';')[0].strip()
        if t.endswith(':'):
            self.op = 'label'; self.kind = 'label'; return
        if t.startswith('.'):
            self.op = t.split()[0]; self.kind = 'directive'; return
        if t.startswith('@'):
            self.op = t.split()[0]; self.kind = 'pseudo'; return
        parts = t.split(None, 1)
        op = parts[0]
        self.op = op
        rest = parts[1] if len(parts) > 1 else ''
        ops = []
        depth = 0; cur = ''
        for ch in rest:
            if ch in '[(': depth += 1
            if ch in '])': depth -= 1
            if ch == ',' and depth == 0:
                ops.append(cur.strip()); cur = ''
            else:
                cur += ch
        if cur.strip(): ops.append(cur.strip())
        mods = []
        if ops:
            last = ops[-1].split()
            ops[-1] = last[0]; mods = last[1:]
        base = re.sub(r'_(e32|e64|dpp|sdwa)$', '', op)
        R = [regs_of(o) for o in ops]
        if base.startswith('v_mfma'):
            self.kind = 'mfma'
            self.wr = R[0]; self.srcab = R[1] | R[2]; self.srcc = R[3]; self.rd = R[1] | R[2] | R[3]
            self.cost = 4
        elif base.startswith('v_'):
            self.kind = 'valu'
            if base in TRANS: self.kind = 'trans'; self.cost = 2
            if base.startswith('v_permlane'):
                self.kind = 'perm'; self.cost = 2
                self.wr = R[0] | R[1]; self.rd = R[0] | R[1]
            elif base.startswith('v_cmp'):
                self.wr = R[0]; self.rd = set().union(*R[1:])
            elif base in ('v_add_co_u32', 'v_addc_co_u32', 'v_sub_co_u32', 'v_subb_co_u32'):
                self.wr = R[0] | R[1]; self.rd = set().union(*R[2:])
            elif base == 'v_nop':
                pass
            else:
                self.wr = R[0]; self.rd = set().union(*R[1:]) if len(R) > 1 else set()
                if base.startswith(('v_fmac', 'v_dot2c', 'v_pk_fmac', 'v_writelane')):
                    self.rd |= R[0]
                if base == 'v_cndmask_b32' and len(ops) == 3:
                    self.rd |= VCC
                if base.startswith('v_dot2'):
                    self.kind = 'dot'
                if base in ('v_readfirstlane_b32', 'v_readlane_b32'):
                    self.kind = 'rdlane'
            if op.endswith('_dpp') or any(m.startswith(('row_', 'quad_perm', 'wave_')) for m in mods):
                self.dpp = True
                self.rd |= R[0]
        elif base.startswith('ds_read') or base.startswith('ds_bpermute') or base.startswith('ds_swizzle'):
            self.kind = 'dsr'; self.wr = R[0]; self.rd = set().union(*R[1:])
        elif base.startswith('ds_write'):
            self.kind = 'dsw'; self.rd = set().union(*R); self.data = set().union(*R[1:])
        elif base.startswith('buffer_load') or base.startswith('global_load'):
            if 'lds' in mods or base.startswith('global_load_lds'):
                self.kind = 'dma'; self.rd = set().union(*R) | M0
            else:
                self.kind = 'vld'; self.wr = R[0]; self.rd = set().union(*R[1:])
                if 'd16' in base: self.rd |= R[0]
        elif base.startswith('buffer_store'):
            self.kind = 'vst'; self.rd = set().union(*R); self.data = R[0]
        elif base.startswith('global_store'):
            self.kind = 'vst'; self.rd = set().union(*R); self.data = R[1]
        elif base.startswith(('buffer_atomic', 'global_atomic')):
            self.kind = 'vst'; self.rd = set().union(*R)
            assert 'sc0' not in mods, 'returning atomics not modelled'
        elif base.startswith(('s_load', 's_memtime', 's_memrealtime')):
            self.kind = 'smem'; self.wr = R[0]; self.rd = set().union(*R[1:]) if len(R) > 1 else set()
        elif base in ('s_waitcnt', 's_nop', 's_barrier', 's_endpgm', 's_sleep', 's_setprio') or base.startswith(('s_cbranch', 's_branch')):
            self.kind = {'s_waitcnt': 'wait', 's_nop': 'nop', 's_barrier': 'barrier'}.get(base, 'ctl')
            if base == 's_nop': self.cost = int(ops[0]) + 1
            if 'vcc' in base: self.rd = set(VCC)
        elif base.startswith('s_cmp'):
            self.kind = 'salu'; self.rd = set().union(*R)
        elif base.startswith('s_'):
            self.kind = 'salu'; self.wr = R[0]; self.rd = set().union(*R[1:]) if len(R) > 1 else set()
            if 'saveexec' in base: self.wr |= EXEC; self.rd |= EXEC
        else:
            raise ValueError('unknown instruction ' + text)

    def is_valu(self):
        return self.kind in ('valu', 'trans', 'perm', 'dot', 'rdlane')
    def states(self):
        if self.kind in ('label', 'directive', 'pseudo'): return 0
        if self.kind == 'nop': return self.cost
        return 1

def vg(s): return {r for r in s if r[0] in 'va'}
def sg(s): return {r for r in s if r[0] == 's'}

def need_states(p, c):
    n = 0
    pv = vg(p.wr)
    if p.is_valu():
        if c.kind == 'mfma' and pv & c.rd: n = max(n, 2)
        if c.kind == 'perm' and pv & c.rd: n = max(n, 2)
        if c.dpp and pv & c.rd: n = max(n, 2)
        if c.kind == 'rdlane' and pv & c.rd: n = max(n, 1)
        if p.kind == 'trans' and c.is_valu() and pv & c.rd: n = max(n, 1)
        if p.kind == 'dot' and pv & (c.rd | c.wr):
            same = c.kind == 'dot' and c.op == p.op
            if not (same and pv == vg(c.wr) and c.text.split(',')[-1].split()[0].strip() == p.text.split()[1].strip(',')):
                n = max(n, 3)
        ps = sg(p.wr)
        if ps:
            if c.is_valu() and ps & c.rd: n = max(n, 4 if c.kind == 'rdlane' else 2)
            if c.kind in ('vld', 'vst', 'dma') and ps & c.rd: n = max(n, 5)
            if c.kind in ('salu', 'ctl', 'smem') and ps & c.rd: n = max(n, 1)
    if p.kind == 'mfma':
        passes8 = '32x32' in p.op
        if c.kind == 'mfma':
            if pv & c.srcab: n = max(n, 12 if passes8 else 8)
            if pv & c.srcc and not (c.srcc == p.wr and c.op == p.op): n = max(n, 10 if passes8 else 6)
        elif c.is_valu() or c.kind in ('dsr', 'dsw', 'vld', 'vst', 'dma'):
            if pv & (c.rd | c.wr): n = max(n, 12 if passes8 else 8)
        if (c.is_valu() or c.kind in ('dsr', 'vld')) and p.srcc & c.wr: n = max(n, 7 if passes8 else 3)
    if p.kind == 'vst' and len(p.data) >= 3 and p.data & c.wr:
        n = max(n, 2)
    if p.kind == 'salu' and M0 & p.wr and c.kind == 'dma': n = max(n, 1)
    if p.kind == 'salu' and EXEC & p.wr and (c.kind == 'mfma' or c.dpp or c.kind in ('perm', 'rdlane')): n = max(n, 5)
    return n

MAXH = 13
def pad_needed(hist, c):
    dist = 0; need = 0
    for p in reversed(hist):
        if dist >= MAXH: break
        r = need_states(p, c)
        if r > dist: need = max(need, r - dist)
        dist += p.states()
    return need

class Prog:
    def __init__(self):
        self.ins = []
    def __call__(self, text, tag=None, cond=False):
        for line in text.split('\n'):
            line = line.strip()
            if not line or line.startswith(';'): continue
            self.ins.append(I(line, tag, cond))
        return self
    def add(self, items):
        for it in items:
            self.ins.append(it)
    def wait_vm(self, tag): self.ins.append(I(f'@wait_vm {tag}'))
    def wait_vm_all(self): self.ins.append(I('@wait_vm_all'))
    def wait_lds(self): self.ins.append(I('@wait_lds'))
    def fence(self): self.ins.append(I('@fence'))

def finalize(ins):
    out = []
    vmq = []
    lgq = []
    def emit_wait(vm=None, lg=None):
        nonlocal vmq, lgq
        parts = []
        if vm is not None:
            vm = min(vm, 63); parts.append(f'vmcnt({vm})')
        if lg is not None:
            lg = min(lg, 15); parts.append(f'lgkmcnt({lg})')
        if out and out[-1].kind == 'wait' and out[-1].note == 'auto':
            prev = out.pop()
            pv = re.search(r'vmcnt\((\d+)\)', prev.text); pl = re.search(r'lgkmcnt\((\d+)\)', prev.text)
            if pv: vm = int(pv.group(1)) if vm is None else min(vm, int(pv.group(1)))
            if pl: lg = int(pl.group(1)) if lg is None else min(lg, int(pl.group(1)))
            parts = ([f'vmcnt({vm})'] if vm is not None else []) + ([f'lgkmcnt({lg})'] if lg is not None else [])
        w = I('s_waitcnt ' + ' '.join(parts)); w.note = 'auto'
        out.append(w)
    def retire_vm(idx):
        nonlocal vmq
        n = sum(1 for e in vmq[idx + 1:] if not e['cond'])
        if n > 63: raise ValueError('vmcnt overflow')
        emit_wait(vm=n); vmq = vmq[idx + 1:]
    def retire_lg(idx):
        nonlocal lgq
        if any(e['smem'] for e in lgq):
            emit_wait(lg=0); lgq = []
            return
        n = sum(1 for e in lgq[idx + 1:] if not e['cond'])
        if n > 15:
            n = 15
            emit_wait(lg=15)
            lgq = lgq[-15:]
            return
        emit_wait(lg=n); lgq = lgq[idx + 1:]
    for it in ins:
        if it.kind == 'pseudo':
            a = it.text.split()
            if a[0] == '@wait_vm':
                idx = max((k for k, e in enumerate(vmq) if e['tag'] == a[1]), default=None)
                if idx is not None: retire_vm(idx)
            elif a[0] == '@wait_vm_all':
                emit_wait(vm=0); vmq = []
            elif a[0] == '@wait_lds':
                if lgq: emit_wait(lg=0); lgq = []
            elif a[0] == '@fence':
                dist = 0; need = 0
                for p in reversed(out):
                    if dist >= MAXH: break
                    r = 0
                    if p.kind == 'mfma': r = 12 if '32x32' in p.op else 8
                    elif p.is_valu(): r = 5 if sg(p.wr) else 3
                    elif p.kind == 'vst': r = 2
                    elif p.kind == 'salu' and (EXEC | M0) & p.wr: r = 5
                    if r > dist: need = max(need, r - dist)
                    dist += p.states()
                if need:
                    n = I(f's_nop {need - 1}'); n.note = 'auto'; out.append(n)
            continue
        if it.kind in ('label', 'directive'):
            it.note = None
            out.append(it); continue
        touch = it.rd | it.wr
        idx = max((k for k, e in enumerate(vmq) if e['regs'] & touch), default=None)
        if idx is not None: retire_vm(idx)
        idx = max((k for k, e in enumerate(lgq) if e['regs'] & touch), default=None)
        if idx is not None: retire_lg(idx)
        if it.kind == 'wait':
            m = re.search(r'vmcnt\((\d+)\)', it.text)
            if m:
                n = int(m.group(1)); assert n == 0, 'manual counted waits not modelled'
                vmq = []
            m = re.search(r'lgkmcnt\((\d+)\)', it.text)
            if m:
                assert int(m.group(1)) == 0
                lgq = []
        p = pad_needed(out[-MAXH * 2:], it)
        if p:
            n = I(f's_nop {p - 1}'); n.note = 'auto'; out.append(n)
        it.note = None
        out.append(it)
        if it.kind in ('vld', 'vst', 'dma'):
            vmq.append(dict(regs=set(it.wr), tag=it.tag, cond=it.cond))
            if sum(1 for e in vmq) > 63:
                raise ValueError('more than 63 VMEM outstanding at ' + it.text)
        elif it.kind in ('dsr', 'dsw'):
            lgq.append(dict(regs=set(it.wr), smem=False, cond=it.cond))
        elif it.kind == 'smem':
            lgq.append(dict(regs=set(it.wr), smem=True, cond=False))
    return out

def text_of(ins):
    lines = []
    for it in ins:
        if it.kind == 'label': lines.append(it.text)
        else: lines.append('    ' + it.text)
    return '\n'.join(lines)
```

```python
import sys
from asmlib import *

NAME = 'interleave_layers__sliding_local_dilated__linear_kernel_hedgehog__prompt'
OPT = dict(prof=False, force_slow=False)

WS_NONCE = 0
WS_READYX = 0x1000
WS_READYC = 0x2000
WS_BOX2 = 0x10000
BOX2_INST = 0x50000
WS_PROF = 0x100000
REG0 = 0x400000
REGSZ = 0x400000
GRPSZ = 0x70000
R_FLAGO = 0x1C0000
R_FLAGX = 0x1C1000
R_FLAGH = 0x1C2000
R_FLAGS1 = 0x1C3000
R_STAT = 0x1C4000
R_HSTAT = 0x1D0000
R_HX = 0x1E0000
R_BOX1 = 0x200000
BOX1_INST = 0x48000
WS_BYTES = 268435456

L_A = 0
L_HALO = 65536
L_S = 81920
L_MISC = 155648
L_RS = L_MISC
L_NM = L_MISC + 320
L_CS = L_MISC + 1024
LDS_BYTES = 163840

sX, sWA, sWOA, sWB, sWOB, sOUT, sWS, sPHI = ('s[%d:%d]' % (n, n + 3) for n in range(8, 40, 4))
sW, sC, sJ, sG, sXS, sRHO, sTAG, sFAST, sBUD, sXCC, sREG, sGRP = ('s%d' % n for n in range(40, 52))
sQ = 's52'
sT = ['s%d' % n for n in range(56, 76)]
sPROF0 = 80

LOG2E = 1.4426950408889634
def f2h(x):
    import struct
    return '0x%08x' % struct.unpack('<I', struct.pack('<f', x))[0]

class RA:
    def __init__(self, lo, hi):
        self.free = set(range(lo, hi))
    def get(self, n=1, al=1):
        if n > 1 and al == 1: al = 2
        for b in sorted(self.free):
            if b % al == 0 and all(b + k in self.free for k in range(n)):
                for k in range(n): self.free.discard(b + k)
                return b
        raise RuntimeError('out of registers for %d' % n)
    def put(self, b, n=1):
        for k in range(n):
            assert b + k not in self.free, b + k
            self.free.add(b + k)
    def extend(self, lo, hi): self.free |= set(range(lo, hi))
    def shrink(self, lo, hi):
        for r in range(lo, hi):
            assert r in self.free, 'register v%d still in use' % r
            self.free.discard(r)

def v(b, n=1): return 'v%d' % b if n == 1 else 'v[%d:%d]' % (b, b + n - 1)
def WA(p, s): b = (p * 16 + s) * 4; return ('a', b)
def WB(p, s):
    return {1: ('a', 192 + s * 4), 2: ('v', 128 + s * 4), 0: ('v', 192 + s * 4)}[p]
def wr(t, n=4, o=0): return '%s[%d:%d]' % (t[0], t[1] + o, t[1] + o + n - 1)

def mf32(d, a, b, c): return 'v_mfma_f32_16x16x32_bf16 %s, %s, %s, %s' % (d, a, b, c)
def mf16(d, a, b, c): return 'v_mfma_f32_16x16x16_bf16 %s, %s, %s, %s' % (d, a, b, c)

class K:
    def __init__(self):
        self.p = Prog()
        self.ra = RA(1, 128)
        self.nlab = 0
        self.nprof = 0
    def lab(self, s):
        self.nlab += 1
        return 'L_%s_%d' % (s, self.nlab)
    def prof(self, name):
        if not OPT['prof']: return
        assert self.nprof < 60
        if self.nprof == 0:
            self.vPROF = self.ra.get()
            self.p('s_waitcnt lgkmcnt(0)\nv_mov_b32 %s, 0\nv_writelane_b32 %s, s78, 0\nv_writelane_b32 %s, s80, 60' % (v(self.vPROF), v(self.vPROF), v(self.vPROF)))
        else:
            self.p('s_memtime s[76:77]\ns_waitcnt lgkmcnt(0)\nv_writelane_b32 %s, s76, %d' % (v(self.vPROF), self.nprof))
        self.nprof += 1
        PROF_NAMES.append(name)

    def barrier(self):
        self.p.wait_lds()
        self.p('s_barrier')
    def pub(self, stores, tag=None, always_slow=False):
        p = self.p
        if always_slow:
            for s in stores: p(s + ' sc1', tag=tag)
            return
        ls, le = self.lab('slow'), self.lab('pe')
        p.fence()
        p('s_cmp_eq_u32 %s, 0\ns_cbranch_scc1 %s' % (sFAST, ls))
        for s in stores: p(s, tag=tag)
        p('s_branch %s\n%s:' % (le, ls))
        for s in stores: p(s + ' sc1', cond=True)
        p('%s:' % le)
        p.fence()
    def flag_store(self, off_sgpr, wave=0, always_slow=False):
        p = self.p
        l = self.lab('nf')
        t = self.ra.get(2)
        p('v_mov_b32 %s, %s\nv_mov_b32 %s, 0' % (v(t), sTAG, v(t + 1)))
        p.fence()
        p('s_cmp_lg_u32 %s, %d\ns_cbranch_scc1 %s' % (sW, wave, l))
        p('s_mov_b64 exec, 1')
        st = 'buffer_store_dword %s, %s, %s, %s offen' % (v(t), v(t + 1), sWS, off_sgpr)
        if always_slow:
            p(st + ' sc1', cond=True)
        else:
            l2, l3 = self.lab('fs'), self.lab('fe')
            p('s_cmp_eq_u32 %s, 0\ns_cbranch_scc1 %s' % (sFAST, l2))
            p(st, cond=True)
            p('s_branch %s\n%s:' % (l3, l2))
            p(st + ' sc1', cond=True)
            p('%s:' % l3)
        p('s_mov_b64 exec, -1\n%s:' % l)
        p.fence()
        self.ra.put(t, 2)
    def poll(self, off_sgpr, nflags, stride=4):
        p = self.p
        a, d = self.ra.get(), self.ra.get()
        sh = {4: 2, 8: 3}[stride]
        p('v_and_b32 %s, %d, %s\nv_lshlrev_b32 %s, %d, %s' % (v(a), nflags - 1, v(self.vLANE), v(a), sh, v(a)))
        l, le = self.lab('poll'), self.lab('pd')
        p.fence()
        p('%s:' % l)
        p('buffer_load_dword %s, %s, %s, %s offen sc1' % (v(d), v(a), sWS, off_sgpr))
        p('s_waitcnt vmcnt(0)')
        p('v_cmp_ne_u32 vcc, %s, %s' % (sTAG, v(d)))
        p('s_cbranch_vccz %s' % le)
        p('s_sub_u32 %s, %s, 1\ns_cmp_gt_i32 %s, 0\ns_cbranch_scc1 %s' % (sBUD, sBUD, sBUD, l))
        p('%s:' % le)
        p.fence()
        self.ra.put(a); self.ra.put(d)
    def xrow2(self, a, b, op):
        p = self.p
        p('v_permlane32_swap_b32 %s, %s' % (v(a), v(b)))
        p('%s %s, %s, %s' % (op, v(a), v(a), v(b)))
        p('v_mov_b32 %s, %s' % (v(b), v(a)))
        p('v_permlane16_swap_b32 %s, %s' % (v(a), v(b)))
        p('%s %s, %s, %s' % (op, v(a), v(a), v(b)))
        p('v_mov_b32 %s, %s' % (v(b), v(a)))
        p('v_permlane32_swap_b32 %s, %s' % (v(a), v(b)))
    def stats_finish(self, S, Q, tok_off):
        p = self.p
        self.xrow2(S, Q, 'v_add_f32')
        t = self.ra.get()
        p('v_mul_f32 %s, %s, %s' % (v(S), f2h(-1.0 / 512), v(S)))
        p('v_mul_f32 %s, %s, %s' % (v(t), v(S), v(S)))
        p('v_mov_b32 %s, %s' % (v(self.vT0), f2h(1.0 / 512)))
        p('v_fma_f32 %s, %s, %s, -%s' % (v(Q), v(Q), v(self.vT0), v(t)))
        p('v_max_f32 %s, 0, %s' % (v(Q), v(Q)))
        p('v_add_f32 %s, %s, %s' % (v(Q), f2h(1e-5), v(Q)))
        p('v_rsq_f32 %s, %s' % (v(Q), v(Q)))
        p('v_lshlrev_b32 %s, 2, %s' % (v(t), v(self.vI)))
        p('v_add_u32 %s, %s, %s' % (v(t), tok_off, v(t)))
        p('ds_write_b32 %s, %s offset:0' % (v(t), v(Q)))
        p('ds_write_b32 %s, %s offset:320' % (v(t), v(S)))
        self.ra.put(t)

    def prologue(self):
        p, ra = self.p, self.ra
        if OPT['prof']: p('s_memtime s[78:79]\ns_memrealtime s[80:81]')
        p('s_cmp_ge_u32 s2, 256\ns_cbranch_scc1 L_exit')
        p('s_load_dwordx4 s[56:59], s[0:1], 0\ns_load_dwordx2 s[60:61], s[0:1], 16')
        p('s_load_dwordx8 s[64:71], s[0:1], 32\ns_load_dwordx4 s[72:75], s[0:1], 64')
        self.prof('start')
        self.vLANE = ra.get(); self.vI = ra.get(); self.vG = ra.get(); self.vL16 = ra.get(); self.vT0 = ra.get()
        p('v_and_b32 %s, 63, v0' % v(self.vLANE))
        p('v_lshrrev_b32 v0, 6, v0')
        p('v_and_b32 %s, 15, %s' % (v(self.vI), v(self.vLANE)))
        p('v_lshrrev_b32 %s, 4, %s' % (v(self.vG), v(self.vLANE)))
        p('v_lshlrev_b32 %s, 4, %s' % (v(self.vL16), v(self.vLANE)))
        p('v_readfirstlane_b32 %s, v0' % sW)
        p('s_and_b32 %s, s2, 7\ns_lshr_b32 %s, s2, 3' % (sXS, sQ))
        p('s_and_b32 %s, %s, 7\ns_lshr_b32 %s, %s, 3' % (sC, sQ, sJ, sQ))
        p('s_lshl_b32 %s, %s, 2\ns_add_u32 %s, %s, %s' % (sG, sXS, sG, sG, sJ))
        p('s_lshl_b32 %s, %s, 1\ns_add_u32 %s, %s, %s\ns_and_b32 %s, %s, 7' % (sRHO, sJ, sRHO, sRHO, sC, sRHO, sRHO))
        p('s_mul_i32 %s, %s, %d\ns_add_u32 %s, %s, %d' % (sREG, sXS, REGSZ, sREG, sREG, REG0))
        p('s_mul_i32 %s, %s, %d\ns_add_u32 %s, %s, %s' % (sGRP, sJ, GRPSZ, sGRP, sGRP, sREG))
        p('s_getreg_b32 %s, hwreg(HW_REG_XCC_ID, 0, 4)' % sXCC)
        p('s_mov_b32 %s, 0x8000' % sBUD)
        p('s_waitcnt lgkmcnt(0)')
        def srd(base, lo, nbytes):
            b = int(base[2:base.index(':')])
            p('s_mov_b32 s%d, s%d\ns_mov_b32 s%d, s%d\ns_mov_b32 s%d, %d\ns_mov_b32 s%d, 0x20000' % (b, lo, b + 1, lo + 1, b + 2, nbytes, b + 3))
        srd(sX, 56, 2048 * 1024); srd(sWA, 58, 512 * 3072); srd(sWOA, 60, 512 * 1024)
        srd(sWB, 64, 512 * 3072); srd(sPHI, 66, 16384); srd(sWOB, 68, 512 * 1024); srd(sOUT, 70, 2048 * 1024)
        srd(sWS, 74, WS_BYTES)
        p('s_load_dword %s, s[74:75], %d' % (sTAG, WS_NONCE))

    def w_src_addr(self, stride):
        p, ra = self.p, self.ra
        d, t = ra.get(), ra.get()
        p('v_lshrrev_b32 %s, 3, %s' % (v(d), v(self.vLANE)))
        p('v_bfe_u32 %s, %s, 4, 1' % (v(t), v(self.vLANE)))
        p('s_and_b32 %s, %s, 1\ns_lshl_b32 %s, %s, 1' % (sT[0], sW, sT[0], sT[0]))
        p('v_or_b32 %s, %s, %s' % (v(t), sT[0], v(t)))
        p('v_lshlrev_b32 %s, 1, %s' % (v(t), v(t)))
        p('v_xor_b32 %s, %s, %s' % (v(t), v(t), v(self.vLANE)))
        p('v_and_b32 %s, 7, %s' % (v(t), v(t)))
        p('v_lshlrev_b32 %s, 4, %s' % (v(t), v(t)))
        p('v_mul_u32_u24 %s, %d, %s' % (v(d), stride, v(d)))
        p('v_add_u32 %s, %s, %s' % (v(d), v(d), v(t)))
        p('s_mul_i32 %s, %s, %d\ns_lshl_b32 %s, %s, 7\ns_add_u32 %s, %s, %s' % (sT[0], sW, 8 * stride, sT[1], sC, sT[0], sT[0], sT[1]))
        p('v_add_u32 %s, %s, %s' % (v(d), sT[0], v(d)))
        ra.put(t)
        return d
    def tr_addr(self, base, gstride, sel):
        p, ra = self.p, self.ra
        d, t = ra.get(), ra.get()
        p('v_bfe_u32 %s, %s, 3, 2' % (v(t), v(self.vLANE)))
        p('v_xor_b32 %s, %s, %s' % (v(t), sel, v(t)))
        p('v_lshlrev_b32 %s, 5, %s' % (v(t), v(t)))
        p('v_mul_u32_u24 %s, %d, %s' % (v(d), gstride, v(self.vG)))
        p('v_add_u32 %s, %s, %s' % (v(d), v(d), v(t)))
        p('v_bfe_u32 %s, %s, 2, 2' % (v(t), v(self.vLANE)))
        p('v_lshl_add_u32 %s, %s, 7, %s' % (v(d), v(t), v(d)))
        p('v_and_b32 %s, 3, %s' % (v(t), v(self.vLANE)))
        p('v_lshl_add_u32 %s, %s, 3, %s' % (v(d), v(t), v(d)))
        p('v_add_u32 %s, %d, %s' % (v(d), base, v(d)))
        ra.put(t)
        return d
    def dma_part(self, srd, src, stride, lds_base, part_off, rotate_k, tag, sig=range(16), jrot=False):
        p = self.p
        p('s_lshl_b32 %s, %s, 10\ns_add_u32 %s, %s, %d' % (sT[2], sW, sT[2], sT[2], lds_base))
        for n in sig:
            if rotate_k:
                p('s_lshl_b32 %s, %s, 1\ns_add_u32 %s, %s, %d\ns_and_b32 %s, %s, 15' % (sT[3], sRHO, sT[3], sT[3], n, sT[3], sT[3]))
                p('s_mul_i32 %s, %s, %d\ns_add_u32 %s, %s, %d' % (sT[3], sT[3], 32 * stride, sT[3], sT[3], part_off))
                p('s_add_u32 m0, %s, %d' % (sT[2], n * 4096))
            else:
                p('s_lshl_b32 %s, %s, 2\ns_add_u32 %s, %s, %d\ns_and_b32 %s, %s, 15' % (sT[3], sJ, sT[3], sT[3], n, sT[3], sT[3]))
                p('s_lshl_b32 %s, %s, 12\ns_add_u32 m0, %s, %s' % (sT[4], sT[3], sT[2], sT[4]))
                p('s_mul_i32 %s, %s, %d' % (sT[3], sT[3], 32 * stride))
            p('buffer_load_dwordx4 %s, %s, %s offen lds' % (v(src), srd, sT[3]), tag=tag)
    def tr_part(self, addr, dst):
        for s in range(16):
            t = dst(s)
            for hf in range(2):
                self.p('ds_read_b64_tr_b16 %s, %s offset:%d' % (wr(t, 2, 2 * hf), v(addr), s * 4096 + hf * 512))
    def ones(self):
        o = self.ra.get(4)
        for k in range(4): self.p('v_mov_b32 %s, 0x3f803f80' % v(o + k))
        return o
    def colsum(self, parts, W, ones, typ):
        p, ra = self.p, self.ra
        acc = {pt: ra.get(4) for pt in parts}
        for s in range(16):
            for pt in parts:
                c = '0' if s == 0 else v(acc[pt], 4)
                if pt == 2: p(mf32(v(acc[pt], 4), v(ones, 4), wr(W(pt, s)), c))
                else: p(mf32(v(acc[pt], 4), wr(W(pt, s)), v(ones, 4), c))
        self.cs_store(acc, typ)
        for pt in parts: ra.put(acc[pt], 4)
    def cs_addr(self, typ):
        p, ra = self.p, self.ra
        a4, a1 = ra.get(), ra.get()
        p('s_mul_i32 %s, %s, 192\ns_add_u32 %s, %s, %d' % (sT[0], sW, sT[0], sT[0], L_CS + typ * 768))
        p('v_lshlrev_b32 %s, 4, %s\nv_add_u32 %s, %s, %s' % (v(a4), v(self.vG), v(a4), sT[0], v(a4)))
        p('v_lshlrev_b32 %s, 2, %s\nv_add_u32 %s, %s, %s' % (v(a1), v(self.vI), v(a1), sT[0], v(a1)))
        return a4, a1
    def cs_store(self, acc, typ):
        p, ra = self.p, self.ra
        a4, a1 = self.cs_addr(typ)
        for pt, r in acc.items():
            if pt == 2: p('ds_write_b32 %s, %s offset:128' % (v(a1), v(r)))
            else: p('ds_write_b128 %s, %s offset:%d' % (v(a4), v(r, 4), pt * 64))
        ra.put(a4); ra.put(a1)
    def cs_load(self, parts, typ):
        p, ra = self.p, self.ra
        a4, a1 = self.cs_addr(typ)
        cs = {}
        for pt in parts:
            if pt == 2:
                cs[pt] = ra.get(); p('ds_read_b32 %s, %s offset:128' % (v(cs[pt]), v(a1)))
            else:
                cs[pt] = ra.get(4); p('ds_read_b128 %s, %s offset:%d' % (v(cs[pt], 4), v(a4), pt * 64))
        ra.put(a4); ra.put(a1)
        return cs
    def stat_addr(self):
        p, ra = self.p, self.ra
        self.vSA1, self.vSA4 = ra.get(), ra.get()
        p('v_lshlrev_b32 %s, 2, %s\nv_add_u32 %s, %d, %s' % (v(self.vSA1), v(self.vI), v(self.vSA1), L_RS, v(self.vSA1)))
        p('v_lshlrev_b32 %s, 4, %s\nv_add_u32 %s, %d, %s' % (v(self.vSA4), v(self.vG), v(self.vSA4), L_RS, v(self.vSA4)))
    def stat_free(self):
        self.ra.put(self.vSA1); self.ra.put(self.vSA4)
    def stat_read(self, t, need_l=True, need_r=True):
        p, ra = self.p, self.ra
        st = {}
        if need_l:
            st['rs'] = ra.get(); st['nm'] = ra.get()
            p('ds_read_b32 %s, %s offset:%d' % (v(st['rs']), v(self.vSA1), t * 64))
            p('ds_read_b32 %s, %s offset:%d' % (v(st['nm']), v(self.vSA1), 320 + t * 64))
        if need_r:
            st['rsr'] = ra.get(4); st['nmr'] = ra.get(4)
            p('ds_read_b128 %s, %s offset:%d' % (v(st['rsr'], 4), v(self.vSA4), t * 64))
            p('ds_read_b128 %s, %s offset:%d' % (v(st['nmr'], 4), v(self.vSA4), 320 + t * 64))
        return st
    def stat_put(self, st):
        for k, r in st.items(): self.ra.put(r, 4 if k.endswith('r') else 1)
    def fix_t(self, acc, cs, st, dst, scale):
        p = self.p
        for r in range(4): p('v_fma_f32 %s, %s, %s, %s' % (v(acc + r), v(st['nm']), v(cs + r), v(acc + r)))
        if scale:
            for r in range(4): p('v_mul_f32 %s, %s, %s' % (v(acc + r), v(st['rs']), v(acc + r)))
        p('v_cvt_pk_bf16_f32 %s, %s, %s' % (v(dst), v(acc), v(acc + 1)))
        p('v_cvt_pk_bf16_f32 %s, %s, %s' % (v(dst + 1), v(acc + 2), v(acc + 3)))
    def fix_v(self, acc, cs, st, dst):
        p = self.p
        for r in range(4): p('v_fma_f32 %s, %s, %s, %s' % (v(acc + r), v(st['nmr'] + r), v(cs), v(acc + r)))
        for r in range(4): p('v_mul_f32 %s, %s, %s' % (v(acc + r), v(st['rsr'] + r), v(acc + r)))
        p('v_cvt_pk_bf16_f32 %s, %s, %s' % (v(dst), v(acc), v(acc + 1)))
        p('v_cvt_pk_bf16_f32 %s, %s, %s' % (v(dst + 1), v(acc + 2), v(acc + 3)))

    def phase1(self):
        p, ra = self.p, self.ra
        ra.extend(128, 256)
        L = self.vLANE
        xs0, xs1, xsh, t, u = ra.get(), ra.get(), ra.get(), ra.get(), ra.get()
        p('v_lshrrev_b32 %s, 3, %s' % (v(t), v(L)))
        p('v_lshrrev_b32 %s, 4, %s' % (v(u), v(L)))
        p('v_xor_b32 %s, %s, %s' % (v(u), v(u), v(L)))
        p('v_and_b32 %s, 7, %s' % (v(u), v(u)))
        p('v_lshlrev_b32 %s, 4, %s' % (v(u), v(u)))
        p('v_lshl_add_u32 %s, %s, 10, %s' % (v(xs0), v(t), v(u)))
        p('s_lshl_b32 %s, %s, 16\ns_lshl_b32 %s, %s, 14\ns_add_u32 %s, %s, %s' % (sT[0], sG, sT[1], sW, sT[1], sT[1], sT[0]))
        p('v_add_u32 %s, %s, %s' % (v(xs0), sT[1], v(xs0)))
        p('v_xor_b32 %s, 64, %s\nv_add_u32 %s, %d, %s' % (v(xs1), v(xs0), v(xs1), 8192 - 1024, v(xs1)))
        p('s_lshl_b32 %s, %s, 2' % (sT[1], sW))
        p('v_add_u32 %s, %s, %s' % (v(t), sT[1], v(t)))
        p('v_lshrrev_b32 %s, 1, %s' % (v(u), v(t)))
        p('v_xor_b32 %s, %s, %s' % (v(u), v(u), v(L)))
        p('v_and_b32 %s, 7, %s' % (v(u), v(u)))
        p('v_lshlrev_b32 %s, 4, %s' % (v(u), v(u)))
        p('v_lshl_add_u32 %s, %s, 10, %s' % (v(xsh), v(t), v(u)))
        p('s_sub_u32 %s, %s, 16384\ns_cmp_eq_u32 %s, 0\ns_cselect_b32 %s, 0, %s' % (sT[1], sT[0], sG, sT[1], sT[1]))
        p('v_add_u32 %s, %s, %s' % (v(xsh), sT[1], v(xsh)))
        self.vWS3 = self.w_src_addr(3072)
        sMX, sMH, sMW = sT[10], sT[11], sT[12]
        p('s_lshl_b32 %s, %s, 14' % (sMX, sW))
        p('s_lshl_b32 %s, %s, 9\ns_add_u32 %s, %s, %d' % (sMH, sW, sMH, sMH, L_HALO))
        p('s_mul_i32 %s, %s, 3072\ns_add_u32 %s, %s, %d' % (sMW, sW, sMW, sMW, L_S))
        def dma_stage(us):
            tag = 'st%d' % us
            p('s_add_u32 %s, %s, %d\ns_and_b32 %s, %s, 7' % (sT[0], sRHO, us, sT[0], sT[0]))
            p('s_lshl_b32 %s, %s, 7\ns_mul_i32 %s, %s, %d' % (sT[1], sT[0], sT[2], sT[0], 64 * 3072))
            p('s_add_u32 m0, %s, %d' % (sMX, us * 2048))
            p('buffer_load_dwordx4 %s, %s, %s offen lds' % (v(xs0), sX, sT[1]), tag=tag)
            p('buffer_load_dwordx4 %s, %s, %s offen offset:1024 lds' % (v(xs1), sX, sT[1]), tag=tag)
            p('s_add_u32 m0, %s, %d' % (sMH, us * 2048))
            p('s_mov_b32 exec_hi, 0')
            p('buffer_load_dwordx4 %s, %s, %s offen lds' % (v(xsh), sX, sT[1]), tag=tag)
            p('s_mov_b64 exec, -1')
            for b in range(2):
                p('s_add_u32 m0, %s, %d' % (sMW, (us % 3) * 24576 + b * 12288))
                if b: p('s_add_u32 %s, %s, %d' % (sT[2], sT[2], 32 * 3072))
                for pt in range(3):
                    p('buffer_load_dwordx4 %s, %s, %s offen offset:%d lds' % (v(self.vWS3), sWA, sT[2], pt * 1024), tag=tag)
        dma_stage(0); dma_stage(1)
        self.vRES = ra.get(8)
        assert self.vRES + 8 <= 128
        p('v_lshlrev_b32 %s, 10, %s\nv_lshl_add_u32 %s, %s, 3, %s' % (v(t), v(self.vI), v(t), v(self.vG), v(t)))
        p('s_lshl_b32 %s, %s, 16\ns_lshl_b32 %s, %s, 14\ns_add_u32 %s, %s, %s' % (sT[0], sG, sT[1], sW, sT[0], sT[0], sT[1]))
        p('s_lshl_b32 %s, %s, 7\ns_add_u32 %s, %s, %s' % (sT[1], sC, sT[0], sT[0], sT[1]))
        for k in range(4):
            p('buffer_load_dwordx2 %s, %s, %s, %s offen offset:%d' % (v(self.vRES + 2 * k, 2), v(t), sX, sT[0], 32 * k))
        self.vPHI = ra.get(2)
        assert self.vPHI + 2 <= 128
        p('v_lshlrev_b32 %s, 7, %s\nv_lshl_add_u32 %s, %s, 1, %s' % (v(u), v(self.vG), v(u), v(self.vI), v(u)))
        p('s_lshl_b32 %s, %s, 2\ns_add_u32 %s, %s, %s\ns_lshl_b32 %s, %s, 9' % (sT[0], sC, sT[0], sT[0], sW, sT[0], sT[0]))
        phit = ra.get(4)
        for e in range(4):
            p('buffer_load_ushort %s, %s, %s, %s offen offset:%d' % (v(phit + e), v(u), sPHI, sT[0], 32 * e))
        sen = ra.get(4)
        for k in range(4): p('v_mov_b32 %s, -1' % v(sen + k))
        p('s_lshl_b32 %s, %s, 2\ns_add_u32 %s, %s, %s\ns_lshl_b32 %s, %s, 3\ns_add_u32 %s, %s, %s' % (sT[0], sC, sT[0], sT[0], sJ, sT[0], sT[0], sT[0], sT[0], sXS))
        p('s_mul_i32 %s, %s, 1280\ns_add_u32 %s, %s, %d' % (sT[0], sT[0], sT[0], sT[0], WS_BOX2))
        p('s_and_b32 %s, %s, 1\ns_mul_i32 %s, %s, %d\ns_add_u32 %s, %s, %s' % (sT[1], sW, sT[1], sT[1], BOX2_INST, sT[0], sT[0], sT[1]))
        p('s_lshr_b32 %s, %s, 1\ns_lshl_b32 %s, %s, 8\ns_add_u32 %s, %s, %s' % (sT[1], sW, sT[1], sT[1], sT[0], sT[0], sT[1]))
        p('buffer_store_dwordx4 %s, %s, %s, %s offen sc1' % (v(sen, 4), v(self.vL16), sWS, sT[0]), tag='pre')
        xr0, xr1, xh0, xh1 = ra.get(), ra.get(), ra.get(), ra.get()
        p('v_lshrrev_b32 %s, 1, %s\nv_xor_b32 %s, %s, %s\nv_lshlrev_b32 %s, 4, %s' % (v(t), v(self.vI), v(t), v(t), v(self.vG), v(t), v(t)))
        p('v_lshl_add_u32 %s, %s, 7, %s' % (v(xr0), v(self.vI), v(t)))
        p('v_xor_b32 %s, 64, %s' % (v(xr1), v(xr0)))
        p('v_add_u32 %s, %d, %s\nv_add_u32 %s, %d, %s' % (v(xh0), L_HALO, v(xr0), v(xh1), L_HALO, v(xr1)))
        trd = self.tr_addr(L_S, 3072, sW)
        ones = self.ones()
        ra.put(t); ra.put(u)
        qa = [ra.get(4) for _ in range(4)]
        ka = [ra.get(4) for _ in range(5)]
        va = [ra.get(4) for _ in range(5)]
        csa = {pt: ra.get(4) for pt in range(3)}
        S, Q, SH, QH = ra.get(), ra.get(), ra.get(), ra.get()
        own = ra.get(4)
        xo0, xo1 = ra.get(), ra.get()
        p('s_lshl_b32 %s, %s, 14' % (sT[0], sW))
        p('v_add_u32 %s, %s, %s\nv_add_u32 %s, %s, %s' % (v(xo0), sT[0], v(xr0), v(xo1), sT[0], v(xr1)))
        for r in (S, Q, SH, QH): p('v_mov_b32 %s, 0' % v(r))
        xf = [[ra.get(4) for _ in range(5)] for _ in range(2)]
        tagged = False
        for us in range(8):
            p.wait_vm('st%d' % us)
            self.barrier()
            if us == 1:
                pass
            if us + 2 < 8: dma_stage(us + 2)
            if us == 2:
                self.ready_publish()
                for e in range(2):
                    p('v_lshl_or_b32 %s, %s, 16, %s' % (v(self.vPHI + e), v(phit + 2 * e + 1), v(phit + 2 * e)))
                ra.put(phit, 4)
            for b in range(2):
                s = 2 * us + b
                for pt in range(3):
                    for hf in range(2):
                        p('ds_read_b64_tr_b16 %s, %s offset:%d' % (wr(WA(pt, s), 2, 2 * hf), v(trd), (us % 3) * 24576 + b * 12288 + pt * 1024 + hf * 512))
                f = xf[b]
                for t5 in range(5):
                    if t5 < 4: p('ds_read_b128 %s, %s offset:%d' % (v(f[t5], 4), v(xr1 if b else xr0), t5 * 16384 + us * 2048))
                    else: p('ds_read_b128 %s, %s offset:%d' % (v(f[4], 4), v(xh1 if b else xh0), us * 2048))
                p('ds_read_b128 %s, %s offset:%d' % (v(own, 4), v(xo1 if b else xo0), us * 2048))
                for t5 in range(5):
                    def c(a): return '0' if s == 0 else v(a, 4)
                    if t5 < 4: p(mf32(v(qa[t5], 4), wr(WA(0, s)), v(f[t5], 4), c(qa[t5])))
                    p(mf32(v(ka[t5], 4), wr(WA(1, s)), v(f[t5], 4), c(ka[t5])))
                    p(mf32(v(va[t5], 4), v(f[t5], 4), wr(WA(2, s)), c(va[t5])))
                for pt in range(3):
                    cc = '0' if s == 0 else v(csa[pt], 4)
                    if pt == 2: p(mf32(v(csa[pt], 4), v(ones, 4), wr(WA(pt, s)), cc))
                    else: p(mf32(v(csa[pt], 4), wr(WA(pt, s)), v(ones, 4), cc))
                for k in range(4):
                    p('v_dot2_f32_bf16 %s, %s, %s, %s' % (v(S), v(own + k), v(ones), v(S)))
                    p('v_dot2_f32_bf16 %s, %s, %s, %s' % (v(Q), v(own + k), v(own + k), v(Q)))
                    p('v_dot2_f32_bf16 %s, %s, %s, %s' % (v(SH), v(f[4] + k), v(ones), v(SH)))
                    p('v_dot2_f32_bf16 %s, %s, %s, %s' % (v(QH), v(f[4] + k), v(f[4] + k), v(QH)))
        self.prof('p1_gemm')
        p('s_lshl_b32 %s, %s, 6\ns_add_u32 %s, %s, %d' % (sT[0], sW, sT[0], sT[0], L_RS))
        self.stats_finish(S, Q, sT[0])
        p('s_mov_b32 %s, %d' % (sT[0], L_RS + 256))
        self.stats_finish(SH, QH, sT[0])
        self.cs_store(csa, 0)
        self.barrier()
        for r in (xs0, xs1, xsh, xr0, xr1, xh0, xh1, trd, S, Q, SH, QH, xo0, xo1): ra.put(r)
        ra.put(own, 4); ra.put(sen, 4)
        for b in range(2):
            for r in xf[b]: ra.put(r, 4)
        self.vWS1 = self.w_src_addr(1024)
        assert self.vWS1 < 128 and self.vWS3 < 128
        self.dma_part(sWOA, self.vWS1, 1024, L_S, 0, False, 'wo')
        self.ready_check()
        self.dma_part(sWB, self.vWS3, 3072, L_A, 1024, True, 'wb')
        cs = {0: csa[0], 1: csa[1], 2: csa[2]}
        self.attn_A_epilogue(0, qa, ka, va, cs, ones)
        for a in qa + ka + va: ra.put(a, 4)
        for a in csa.values(): ra.put(a, 4)
        ra.put(ones, 4)

    def ready_publish(self):
        p, ra = self.p, self.ra
        p('s_waitcnt lgkmcnt(0)')
        p('s_mul_i32 %s, %s, 0x9e3779b1\ns_add_u32 %s, %s, 0x7f4a7c15' % (sTAG, sTAG, sTAG, sTAG))
        t = ra.get(2); a = ra.get()
        l = self.lab('rdy')
        p('v_mov_b32 %s, %s\nv_mov_b32 %s, %s\nv_mov_b32 %s, 0' % (v(t), sTAG, v(t + 1), sXCC, v(a)))
        p('s_lshl_b32 %s, %s, 8\ns_lshl_b32 %s, %s, 3\ns_add_u32 %s, %s, %s\ns_add_u32 %s, %s, %d' % (sT[0], sXS, sT[1], sQ, sT[0], sT[0], sT[1], sT[0], sT[0], WS_READYX))
        p('s_lshl_b32 %s, %s, 7\ns_lshl_b32 %s, %s, 2\ns_add_u32 %s, %s, %s\ns_add_u32 %s, %s, %d' % (sT[1], sC, sT[2], sG, sT[1], sT[1], sT[2], sT[1], sT[1], WS_READYC))
        p.fence()
        p('s_cmp_lg_u32 %s, 0\ns_cbranch_scc1 %s\ns_mov_b64 exec, 1' % (sW, l))
        p('buffer_store_dwordx2 %s, %s, %s, %s offen sc1' % (v(t, 2), v(a), sWS, sT[0]), cond=True)
        p('buffer_store_dword %s, %s, %s, %s offen sc1' % (v(t), v(a), sWS, sT[1]), cond=True)
        p('s_mov_b64 exec, -1\n%s:' % l)
        p.fence()
        ra.put(t, 2); ra.put(a)
    def ready_check(self):
        p, ra = self.p, self.ra
        p('s_lshl_b32 %s, %s, 7\ns_add_u32 %s, %s, %d' % (sT[5], sC, sT[5], sT[5], WS_READYC))
        self.poll(sT[5], 32)
        p('s_lshl_b32 %s, %s, 8\ns_add_u32 %s, %s, %d' % (sT[5], sXS, sT[5], sT[5], WS_READYX))
        self.poll(sT[5], 32, stride=8)
        a, d = ra.get(), ra.get()
        p('v_and_b32 %s, 31, %s\nv_lshlrev_b32 %s, 3, %s' % (v(a), v(self.vLANE), v(a), v(a)))
        p('buffer_load_dword %s, %s, %s, %s offen offset:4 sc1' % (v(d), v(a), sWS, sT[5]))
        p('v_cmp_ne_u32 vcc, %s, %s' % (sXCC, v(d)))
        p('s_cmp_eq_u64 vcc, 0\ns_cselect_b32 %s, %d, 0' % (sFAST, 0 if OPT['force_slow'] else 1))
        ra.put(a); ra.put(d)

    def masks(self):
        p, ra = self.p, self.ra
        mp, mc = ra.get(4), ra.get(4)
        d, big = ra.get(), ra.get()
        p('v_mov_b32 %s, %s' % (v(big), f2h(-1e30)))
        for r in range(4):
            for (m, add) in ((mc, 0), (mp, 16)):
                p('v_lshlrev_b32 %s, 2, %s\nv_sub_u32 %s, %s, %s' % (v(d), v(self.vG), v(d), v(self.vI), v(d)))
                p('v_add_u32 %s, %d, %s' % (v(d), add - r, v(d)))
                p('v_and_b32 %s, 0xfffffff1, %s' % (v(d), v(d)))
                p('v_cmp_eq_u32 vcc, 0, %s' % v(d))
                p('v_cndmask_b32 %s, %s, 0, vcc' % (v(m + r), v(big)))
        ra.put(d)
        return mp, mc, big
    def o_addr(self):
        p, ra = self.p, self.ra
        a, t = ra.get(), ra.get()
        p('v_and_b32 %s, 1, %s\nv_lshlrev_b32 %s, 14, %s' % (v(t), v(self.vG), v(a), v(t)))
        p('v_lshrrev_b32 %s, 1, %s\nv_lshl_add_u32 %s, %s, 8, %s' % (v(t), v(self.vG), v(a), v(t), v(a)))
        p('v_lshl_add_u32 %s, %s, 4, %s' % (v(a), v(self.vI), v(a)))
        p('s_lshl_b32 %s, %s, 2\ns_add_u32 %s, %s, %s\ns_lshl_b32 %s, %s, 9' % (sT[0], sC, sT[0], sT[0], sW, sT[0], sT[0]))
        p('v_add_u32 %s, %s, %s' % (v(a), sT[0], v(a)))
        ra.put(t)
        return a
    def o_publish(self, l, ob):
        p, ra = self.p, self.ra
        a = self.o_addr()
        for pr in range(2):
            b = ob + 4 * pr
            p('v_permlane16_swap_b32 %s, %s' % (v(b), v(b + 2)))
            p('v_permlane16_swap_b32 %s, %s' % (v(b + 1), v(b + 3)))
        p('s_add_u32 %s, %s, %d\ns_add_u32 %s, %s, 32768' % (sT[0], sGRP, l * 65536, sT[1], sT[0]))
        self.pub(['buffer_store_dwordx4 %s, %s, %s, %s offen' % (v(ob + 4 * pr, 4), v(a), sWS, sT[pr]) for pr in range(2)])
        p.wait_vm_all()
        self.barrier()
        p('s_lshl_b32 %s, %s, 7\ns_add_u32 %s, %s, %s\ns_add_u32 %s, %s, %d' % (sT[6], sJ, sT[6], sT[6], sREG, sT[6], sT[6], R_FLAGO + l * 512))
        p('s_lshl_b32 %s, %s, 2\ns_add_u32 %s, %s, %s' % (sT[0], sC, sT[0], sT[0], sT[6]))
        self.flag_store(sT[0])
        ra.put(a)
    def attn_tile(self, t, Qb, cq, Kb, Vb, mp, mc, ones, ob):
        p, ra = self.p, self.ra
        S = ra.get(8); m, m2 = ra.get(), ra.get(); P = ra.get(4); den = ra.get(4); O = ra.get(4)
        p(mf16(v(S, 4), v(Kb + 2 * t, 2), v(Qb, 2), v(mp, 4)))
        p(mf16(v(S + 4, 4), v(Kb + 2 * t + 2, 2), v(Qb, 2), v(mc, 4)))
        p('v_max3_f32 %s, %s, %s, %s' % (v(m), v(S), v(S + 1), v(S + 2)))
        p('v_max3_f32 %s, %s, %s, %s' % (v(m2), v(S + 3), v(S + 4), v(S + 5)))
        p('v_max3_f32 %s, %s, %s, %s' % (v(m), v(m), v(S + 6), v(S + 7)))
        p('v_max_f32 %s, %s, %s' % (v(m), v(m), v(m2)))
        for sw in ('32', '16'):
            p('v_mov_b32 %s, %s' % (v(m2), v(m)))
            p('v_permlane%s_swap_b32 %s, %s' % (sw, v(m), v(m2)))
            p('v_max_f32 %s, %s, %s' % (v(m), v(m), v(m2)))
        p('v_mul_f32_e64 %s, -%s, %s' % (v(m), v(m), v(cq)))
        for r in range(8): p('v_fma_f32 %s, %s, %s, %s' % (v(S + r), v(S + r), v(cq), v(m)))
        for r in range(8): p('v_exp_f32 %s, %s' % (v(S + r), v(S + r)))
        for r in range(4): p('v_cvt_pk_bf16_f32 %s, %s, %s' % (v(P + r), v(S + 2 * r), v(S + 2 * r + 1)))
        p(mf32(v(den, 4), v(ones, 4), v(P, 4), '0'))
        p(mf32(v(O, 4), v(Vb + 2 * t, 4), v(P, 4), '0'))
        p('v_rcp_f32 %s, %s' % (v(den), v(den)))
        for r in range(4): p('v_mul_f32 %s, %s, %s' % (v(O + r), v(den), v(O + r)))
        p('v_cvt_pk_bf16_f32 %s, %s, %s' % (v(ob + 2 * t), v(O), v(O + 1)))
        p('v_cvt_pk_bf16_f32 %s, %s, %s' % (v(ob + 2 * t + 1), v(O + 2), v(O + 3)))
        ra.put(S, 8); ra.put(m); ra.put(m2); ra.put(P, 4); ra.put(den, 4); ra.put(O, 4)
    def first_group_mask(self, mp, big):
        p = self.p
        l = self.lab('g0')
        p.fence()
        p('s_cmp_lg_u32 %s, 0\ns_cbranch_scc1 %s' % (sG, l))
        for r in range(4): p('v_mov_b32 %s, %s' % (v(mp + r), v(big)))
        p('%s:' % l)
        p.fence()
    def attn_A_epilogue(self, l, qa, ka, va, cs, ones):
        p, ra = self.p, self.ra
        self.stat_addr()
        mp, mc, big = self.masks()
        Kb, Vb = ra.get(10), ra.get(10)
        Qb = ra.get(8); cq = ra.get(4); ob = ra.get(8, 4)
        for t in (4, 0, 1, 2, 3):
            st = self.stat_read(t)
            slot = 0 if t == 4 else 2 * t + 2
            if t < 4:
                self.fix_t(qa[t], cs[0], st, Qb + 2 * t, False)
                p('v_mul_f32 %s, %s, %s' % (v(cq + t), f2h(0.25 * LOG2E), v(st['rs'])))
            self.fix_t(ka[t], cs[1], st, Kb + slot, True)
            self.fix_v(va[t], cs[2], st, Vb + slot)
            self.stat_put(st)
        for t in (1, 2, 3, 0):
            if t == 0: self.first_group_mask(mp, big)
            self.attn_tile(t, Qb + 2 * t, cq + t, Kb, Vb, mp, mc, ones, ob)
        self.prof('A%d_epi' % l)
        self.o_publish(l, ob)
        ra.put(Kb, 10); ra.put(Vb, 10); ra.put(Qb, 8); ra.put(cq, 4); ra.put(ob, 8)
        ra.put(mp, 4); ra.put(mc, 4); ra.put(big)
        self.stat_free()

    def wo_phase(self, l, after_issue=None):
        p, ra = self.p, self.ra
        acc = [ra.get(4) for _ in range(4)]
        for t in range(4):
            for h in range(2):
                p('v_lshlrev_b32 %s, 16, %s' % (v(acc[t] + 2 * h), v(self.vRES + 2 * t + h)))
                p('v_and_b32 %s, 0xffff0000, %s' % (v(acc[t] + 2 * h + 1), v(self.vRES + 2 * t + h)))
        tr0 = self.tr_addr(L_S, 1024, '0')
        tra = [tr0] + [ra.get() for _ in range(3)]
        for t in range(1, 4): p('v_xor_b32 %s, %d, %s' % (v(tra[t]), 32 * t, v(tr0)))
        NOF = 8
        of = [ra.get(4) for _ in range(NOF)]
        wf = [[ra.get(4) for _ in range(4)] for _ in range(2)]
        def wread(s):
            for t in range(4):
                for hf in range(2):
                    p('ds_read_b64_tr_b16 %s, %s offset:%d' % (v(wf[s & 1][t] + 2 * hf, 2), v(tra[t]), s * 4096 + hf * 512))
        wread(0)
        self.poll(sT[6], 8)
        self.prof('wo%d_polled' % l)
        p('s_lshl_b32 %s, %s, 14\ns_add_u32 %s, %s, %s\ns_add_u32 %s, %s, %d' % (sT[7], sW, sT[7], sT[7], sGRP, sT[7], sT[7], l * 65536))
        def oload(s):
            if s % 4 == 0 and s: p('s_add_u32 %s, %s, 4096' % (sT[7], sT[7]))
            p('buffer_load_dwordx4 %s, %s, %s, %s offen offset:%d' % (v(of[s % NOF], 4), v(self.vL16), sWS, sT[7], (s % 4) * 1024))
        for s in range(NOF): oload(s)
        for s in range(16):
            if s + 1 < 16: wread(s + 1)
            for t in range(4):
                p(mf32(v(acc[t], 4), v(wf[s & 1][t], 4), v(of[s % NOF], 4), v(acc[t], 4)))
            if s + NOF < 16: oload(s + NOF)
            if s + NOF == 15 and after_issue: after_issue()
        for r in of: ra.put(r, 4)
        for b in wf:
            for r in b: ra.put(r, 4)
        for r in tra: ra.put(r)
        self.prof('wo%d_gemm' % l)
        for t in range(4):
            for h in range(2):
                p('v_cvt_pk_bf16_f32 %s, %s, %s' % (v(self.vRES + 2 * t + h), v(acc[t] + 2 * h), v(acc[t] + 2 * h + 1)))
        xo = ra.get(8, 4)
        for k in range(8): p('v_mov_b32 %s, %s' % (v(xo + k), v(self.vRES + k)))
        for pr in range(2):
            b = xo + 4 * pr
            p('v_permlane16_swap_b32 %s, %s' % (v(b), v(b + 2)))
            p('v_permlane16_swap_b32 %s, %s' % (v(b + 1), v(b + 3)))
        a, t1 = ra.get(), ra.get()
        if l == 3:
            p('v_and_b32 %s, 1, %s\nv_lshlrev_b32 %s, 5, %s' % (v(t1), v(self.vG), v(a), v(t1)))
            p('v_lshrrev_b32 %s, 1, %s\nv_lshl_add_u32 %s, %s, 4, %s' % (v(t1), v(self.vG), v(a), v(t1), v(a)))
            p('v_lshl_add_u32 %s, %s, 10, %s' % (v(a), v(self.vI), v(a)))
            p('s_lshl_b32 %s, %s, 16\ns_lshl_b32 %s, %s, 14\ns_add_u32 %s, %s, %s' % (sT[0], sG, sT[1], sW, sT[0], sT[0], sT[1]))
            p('s_lshl_b32 %s, %s, 7\ns_add_u32 %s, %s, %s' % (sT[1], sC, sT[0], sT[0], sT[1]))
            for pr in range(2):
                p('buffer_store_dwordx4 %s, %s, %s, %s offen offset:%d' % (v(xo + 4 * pr, 4), v(a), sOUT, sT[0], 64 * pr))
        else:
            S, Q = ra.get(), ra.get()
            p('v_add_f32 %s, %s, %s\nv_mul_f32 %s, %s, %s' % (v(S), v(acc[0]), v(acc[0] + 1), v(Q), v(acc[0]), v(acc[0])))
            for n in range(1, 16):
                r = acc[n >> 2] + (n & 3)
                if n > 1: p('v_add_f32 %s, %s, %s' % (v(S), v(S), v(r)))
                p('v_fmac_f32 %s, %s, %s' % (v(Q), v(r), v(r)))
            p('v_permlane32_swap_b32 %s, %s' % (v(S), v(Q)))
            p('v_add_f32 %s, %s, %s\nv_mov_b32 %s, %s' % (v(S), v(S), v(Q), v(Q), v(S)))
            p('v_permlane16_swap_b32 %s, %s' % (v(S), v(Q)))
            p('v_add_f32 %s, %s, %s' % (v(S), v(S), v(Q)))
            p('v_and_b32 %s, 1, %s\nv_lshlrev_b32 %s, 9, %s' % (v(t1), v(self.vG), v(a), v(t1)))
            p('v_lshrrev_b32 %s, 1, %s\nv_lshl_add_u32 %s, %s, 8, %s' % (v(t1), v(self.vG), v(a), v(t1), v(a)))
            p('v_lshl_add_u32 %s, %s, 4, %s' % (v(a), v(self.vI), v(a)))
            p('v_lshlrev_b32 %s, 2, %s\nv_lshl_add_u32 %s, %s, 4, %s' % (v(t1), v(t1), v(t1), v(self.vI), v(t1)))
            p('s_lshl_b32 %s, %s, 11' % (sT[2], sC))
            p('s_lshl_b32 %s, %s, 14\ns_add_u32 %s, %s, %s\ns_add_u32 %s, %s, %s\ns_add_u32 %s, %s, %d' % (sT[0], sW, sT[0], sT[0], sT[2], sT[0], sT[0], sGRP, sT[0], sT[0], (4 + l) * 65536))
            p('s_lshr_b32 %s, %s, 1\ns_lshl_b32 %s, %s, 8\ns_and_b32 %s, %s, 1\ns_lshl_b32 %s, %s, 3\ns_add_u32 %s, %s, %s' % (sT[3], sC, sT[3], sT[3], sT[4], sC, sT[4], sT[4], sT[3], sT[3], sT[4]))
            p('s_lshl_b32 %s, %s, 12\ns_lshl_b32 %s, %s, 10\ns_add_u32 %s, %s, %s\ns_add_u32 %s, %s, %s' % (sT[1], sJ, sT[4], sW, sT[1], sT[1], sT[4], sT[1], sT[1], sT[3]))
            p('s_add_u32 %s, %s, %s\ns_add_u32 %s, %s, %d' % (sT[1], sT[1], sREG, sT[1], sT[1], R_STAT + l * 16384))
            self.pub(['buffer_store_dwordx4 %s, %s, %s, %s offen offset:%d' % (v(xo + 4 * pr, 4), v(a), sWS, sT[0], 1024 * pr) for pr in range(2)] +
                     ['buffer_store_dword %s, %s, %s, %s offen' % (v(S), v(t1), sWS, sT[1])])
            p.wait_vm_all()
            self.barrier()
            p('s_lshl_b32 %s, %s, 7\ns_add_u32 %s, %s, %s\ns_add_u32 %s, %s, %d' % (sT[6], sJ, sT[6], sT[6], sREG, sT[6], sT[6], R_FLAGX + l * 512))
            p('s_lshl_b32 %s, %s, 2\ns_add_u32 %s, %s, %s' % (sT[0], sC, sT[0], sT[0], sT[6]))
            self.flag_store(sT[0])
            if l == 1:
                lb = self.lab('nh')
                p('s_lshl_b32 %s, %s, 14\ns_add_u32 %s, %s, %s\ns_add_u32 %s, %s, %s\ns_add_u32 %s, %s, %d' % (sT[0], sJ, sT[0], sT[0], sT[2], sT[0], sT[0], sREG, sT[0], sT[0], R_HX))
                p('s_lshl_b32 %s, %s, 10\ns_add_u32 %s, %s, %s\ns_add_u32 %s, %s, %s\ns_add_u32 %s, %s, %d' % (sT[1], sJ, sT[1], sT[1], sT[3], sT[1], sT[1], sREG, sT[1], sT[1], R_HSTAT))
                p.fence()
                p('s_cmp_lg_u32 %s, 3\ns_cbranch_scc1 %s' % (sW, lb))
                for pr in range(2):
                    p('buffer_store_dwordx4 %s, %s, %s, %s offen offset:%d sc1' % (v(xo + 4 * pr, 4), v(a), sWS, sT[0], 1024 * pr), cond=True)
                p('buffer_store_dword %s, %s, %s, %s offen sc1' % (v(S), v(t1), sWS, sT[1]), cond=True)
                p('%s:' % lb)
                p.wait_vm_all()
                p('s_lshl_b32 %s, %s, 7\ns_lshl_b32 %s, %s, 2\ns_add_u32 %s, %s, %s\ns_add_u32 %s, %s, %s\ns_add_u32 %s, %s, %d' % (sT[0], sJ, sT[1], sC, sT[0], sT[0], sT[1], sT[0], sT[0], sREG, sT[0], sT[0], R_FLAGH))
                self.flag_store(sT[0], wave=3, always_slow=True)
            ra.put(S); ra.put(Q)
        ra.put(a); ra.put(t1); ra.put(xo, 8)
        for r in acc: ra.put(r, 4)
        self.prof('wo%d_done' % l)

    def x_tile_dma(self, src_sgpr, lds_off, tag):
        p = self.p
        for pp in range(2):
            p('s_lshl_b32 %s, %s, 1\ns_add_u32 %s, %s, %s\ns_add_u32 %s, %s, %d\ns_and_b32 %s, %s, 7' % (sT[3], sW, sT[3], sT[3], sRHO, sT[3], sT[3], pp, sT[3], sT[3]))
            p('s_lshl_b32 %s, %s, 11\ns_add_u32 %s, %s, %s' % (sT[3], sT[3], sT[3], sT[3], src_sgpr))
            p('s_lshl_b32 %s, %s, 12\ns_add_u32 m0, %s, %d' % (sT[4], sW, sT[4], lds_off + pp * 2048))
            for m in range(2):
                p('buffer_load_dwordx4 %s, %s, %s offen offset:%d lds' % (v(self.vL16), sWS, sT[3], 1024 * m), tag=tag)
    def x_gather(self, l):
        p, ra = self.p, self.ra
        self.poll(sT[6], 8)
        self.prof('x%d_polled' % l)
        st = ra.get(4)
        p('s_lshl_b32 %s, %s, 12\ns_lshl_b32 %s, %s, 10\ns_add_u32 %s, %s, %s\ns_add_u32 %s, %s, %s\ns_add_u32 %s, %s, %d' % (sT[0], sJ, sT[1], sW, sT[0], sT[0], sT[1], sT[0], sT[0], sREG, sT[0], sT[0], R_STAT + l * 16384))
        p('buffer_load_dwordx4 %s, %s, %s, %s offen' % (v(st, 4), v(self.vL16), sWS, sT[0]))
        for t in range(4):
            p('s_add_u32 %s, %s, %d' % (sT[5], sGRP, (4 + l) * 65536 + t * 16384))
            self.x_tile_dma(sT[5], L_A + t * 16384, 'x%d' % t)
        p('v_add_f32 %s, %s, %s\nv_add_f32 %s, %s, %s' % (v(st), v(st), v(st + 2), v(st + 1), v(st + 1), v(st + 3)))
        p('s_lshl_b32 %s, %s, 6\ns_add_u32 %s, %s, %d' % (sT[0], sW, sT[0], sT[0], L_RS))
        self.stats_finish(st, st + 1, sT[0])
        ra.put(st, 4)
    def halo_gather(self):
        p, ra = self.p, self.ra
        l0, l1 = self.lab('h0'), self.lab('h1')
        p('s_sub_u32 %s, %s, 1\ns_lshr_b32 %s, %s, 2\ns_and_b32 %s, %s, 3' % (sT[0], sG, sT[1], sT[0], sT[0], sT[0]))
        p('s_mul_i32 %s, %s, %d\ns_add_u32 %s, %s, %d' % (sT[1], sT[1], REGSZ, sT[1], sT[1], REG0))
        p('s_lshl_b32 %s, %s, 7\ns_add_u32 %s, %s, %s\ns_add_u32 %s, %s, %d' % (sT[8], sT[0], sT[8], sT[8], sT[1], sT[8], sT[8], R_FLAGH))
        p('s_lshl_b32 %s, %s, 14\ns_add_u32 %s, %s, %s\ns_add_u32 %s, %s, %d' % (sT[5], sT[0], sT[5], sT[5], sT[1], sT[5], sT[5], R_HX))
        p('s_lshl_b32 %s, %s, 10\ns_add_u32 %s, %s, %s\ns_add_u32 %s, %s, %d' % (sT[9], sT[0], sT[9], sT[9], sT[1], sT[9], sT[9], R_HSTAT))
        p('s_cmp_eq_u32 %s, 0' % sG)
        p('s_cselect_b32 %s, %s, %s' % (sT[8], sT[6], sT[8]))
        p('s_add_u32 %s, %s, %d\ns_cmp_eq_u32 %s, 0\ns_cselect_b32 %s, %s, %s' % (sT[0], sGRP, 5 * 65536, sG, sT[5], sT[0], sT[5]))
        p('s_add_u32 %s, %s, %d\ns_cmp_eq_u32 %s, 0\ns_cselect_b32 %s, %s, %s' % (sT[0], sREG, R_STAT + 16384, sG, sT[9], sT[0], sT[9]))
        self.poll(sT[8], 8)
        st = ra.get(4)
        p('buffer_load_dwordx4 %s, %s, %s, %s offen' % (v(st, 4), v(self.vL16), sWS, sT[9]))
        self.x_tile_dma(sT[5], L_HALO, 'xh')
        p('v_add_f32 %s, %s, %s\nv_add_f32 %s, %s, %s' % (v(st), v(st), v(st + 2), v(st + 1), v(st + 1), v(st + 3)))
        p('s_mov_b32 %s, %d' % (sT[0], L_RS + 256))
        self.stats_finish(st, st + 1, sT[0])
        ra.put(st, 4)
    def gemm_tile(self, t, parts, W, acc, xf, xa):
        p = self.p
        n = len(xf)
        off = (t * 16384) if t < 4 else 0
        def rd(s): p('ds_read_b128 %s, %s offset:%d' % (v(xf[s % n], 4), v(xa), off + s * 1024))
        for s in range(n - 1): rd(s)
        for s in range(16):
            if s + n - 1 < 16: rd(s + n - 1)
            for pt in parts:
                c = '0' if s == 0 else v(acc[pt], 4)
                if pt == 2: p(mf32(v(acc[pt], 4), v(xf[s % n], 4), wr(W(pt, s)), c))
                else: p(mf32(v(acc[pt], 4), wr(W(pt, s)), v(xf[s % n], 4), c))

    def layer_A2(self):
        p, ra = self.p, self.ra
        self.x_gather(1)
        self.dma_part(sWOA, self.vWS1, 1024, L_S, 0, False, 'wo')
        self.halo_gather()
        cs = self.cs_load((0, 1, 2), 0)
        ones = self.ones()
        xh = ra.get()
        p('v_add_u32 %s, %d, %s' % (v(xh), L_HALO, v(self.vL16)))
        p.wait_vm_all()
        self.barrier()
        self.prof('A2_loaded')
        self.stat_addr()
        mp, mc, big = self.masks()
        Kb, Vb = ra.get(10), ra.get(10)
        Qb = ra.get(8); cq = ra.get(4); ob = ra.get(8, 4)
        xf = [ra.get(4) for _ in range(3)]
        for t in (4, 0, 1, 2, 3):
            parts = (1, 2) if t == 4 else (0, 1, 2)
            acc = {pt: ra.get(4) for pt in parts}
            self.gemm_tile(t, parts, WA, acc, xf, xh if t == 4 else self.vL16)
            st = self.stat_read(t)
            slot = 0 if t == 4 else 2 * t + 2
            if t < 4:
                self.fix_t(acc[0], cs[0], st, Qb + 2 * t, False)
                p('v_mul_f32 %s, %s, %s' % (v(cq + t), f2h(0.25 * LOG2E), v(st['rs'])))
            self.fix_t(acc[1], cs[1], st, Kb + slot, True)
            self.fix_v(acc[2], cs[2], st, Vb + slot)
            self.stat_put(st)
            for r in acc.values(): ra.put(r, 4)
        for r in xf: ra.put(r, 4)
        for t in (1, 2, 3, 0):
            if t == 0: self.first_group_mask(mp, big)
            self.attn_tile(t, Qb + 2 * t, cq + t, Kb, Vb, mp, mc, ones, ob)
        self.prof('A2_epi')
        self.o_publish(2, ob)
        ra.put(Kb, 10); ra.put(Vb, 10); ra.put(Qb, 8); ra.put(cq, 4); ra.put(ob, 8)
        ra.put(mp, 4); ra.put(mc, 4); ra.put(big); ra.put(xh); ra.put(ones, 4)
        ra.put(cs[0], 4); ra.put(cs[1], 4); ra.put(cs[2])
        self.stat_free()

    def phi(self, acc, cs, st, sumsel, dst):
        p, ra = self.p, self.ra
        tb = ra.get(2); pp = ra.get(4); M, N, ck = ra.get(), ra.get(), ra.get(); e = ra.get(8)
        self.fix_t(acc, cs, st, tb, False)
        p(mf16(v(pp, 4), v(self.vPHI, 2), v(tb, 2), '0'))
        p('v_mul_f32 %s, %s, %s' % (v(ck), f2h(LOG2E), v(st['rs'])))
        p('v_max3_f32 %s, %s, %s, %s' % (v(M), v(pp), v(pp + 1), v(pp + 2)))
        p('v_max3_f32 %s, -%s, -%s, -%s' % (v(N), v(pp), v(pp + 1), v(pp + 2)))
        p('v_max_f32 %s, %s, %s' % (v(M), v(M), v(pp + 3)))
        p('v_max_f32_e64 %s, %s, -%s' % (v(N), v(N), v(pp + 3)))
        self.xrow2(M, N, 'v_max_f32')
        p('v_mul_f32_e64 %s, -%s, %s' % (v(M), v(M), v(ck)))
        p('v_mul_f32_e64 %s, -%s, %s' % (v(N), v(N), v(ck)))
        for r in range(4): p('v_fma_f32 %s, %s, %s, %s' % (v(e + r), v(pp + r), v(ck), v(M)))
        for r in range(4): p('v_fma_f32 %s, -%s, %s, %s' % (v(e + 4 + r), v(pp + r), v(ck), v(N)))
        for r in range(8): p('v_exp_f32 %s, %s' % (v(e + r), v(e + r)))
        for r in range(4): p('v_cvt_pk_bf16_f32 %s, %s, %s' % (v(dst + r), v(e + 2 * r), v(e + 2 * r + 1)))
        p(mf32(v(pp, 4), v(sumsel, 4), v(dst, 4), '0'))
        p('v_rcp_f32 %s, %s\nv_rcp_f32 %s, %s' % (v(M), v(pp), v(N), v(pp + 1)))
        for r in range(4): p('v_mul_f32 %s, %s, %s' % (v(e + r), v(M), v(e + r)))
        for r in range(4): p('v_mul_f32 %s, %s, %s' % (v(e + 4 + r), v(N), v(e + 4 + r)))
        for r in range(4): p('v_cvt_pk_bf16_f32 %s, %s, %s' % (v(dst + r), v(e + 2 * r), v(e + 2 * r + 1)))
        ra.put(tb, 2); ra.put(pp, 4); ra.put(M); ra.put(N); ra.put(ck); ra.put(e, 8)

    def layer_B(self, l):
        p, ra = self.p, self.ra
        inst = l >> 1
        first = l == 1
        ones = self.ones()
        if first:
            tra = self.tr_addr(L_A, 1024, sW)
            self.tr_part(tra, lambda s: WB(2, s))
            ra.put(tra)
            self.barrier()
            self.colsum((1, 2), WB, ones, 1)
        self.x_gather(l - 1)
        if first: self.dma_part(sWB, self.vWS3, 3072, L_S, 0, True, 'wb')
        else: self.dma_part(sWOB, self.vWS1, 1024, L_S, 0, False, 'wo')
        sumsel = ra.get(4); ident = ra.get(2); t = ra.get()
        p('v_and_b32 %s, 1, %s\nv_cmp_eq_u32 vcc, 0, %s' % (v(t), v(self.vI), v(t)))
        for k in range(2):
            p('v_cndmask_b32 %s, 0, %s, vcc' % (v(sumsel + k), v(ones)))
            p('v_cndmask_b32 %s, %s, 0, vcc' % (v(sumsel + 2 + k), v(ones)))
        p('v_lshlrev_b32 %s, 2, %s\nv_sub_u32 %s, %s, %s' % (v(t), v(self.vG), v(t), v(self.vI), v(t)))
        tc = ra.get()
        for k in range(2):
            p('v_mov_b32 %s, 0\nv_mov_b32 %s, 0x3f80' % (v(ident + k), v(tc)))
            p('v_cmp_eq_u32 vcc, %d, %s\nv_cndmask_b32 %s, %s, %s, vcc' % (2 * k, v(t), v(ident + k), v(ident + k), v(tc)))
            p('v_mov_b32 %s, 0x3f800000' % v(tc))
            p('v_cmp_eq_u32 vcc, %d, %s\nv_cndmask_b32 %s, %s, %s, vcc' % (2 * k + 1, v(t), v(ident + k), v(ident + k), v(tc)))
        ra.put(tc); ra.put(t)
        p.wait_vm('x3')
        self.barrier()
        self.prof('B%d_loaded' % l)
        cs = self.cs_load((1, 2), 1)
        self.stat_addr()
        xf = [ra.get(4) for _ in range(3)]
        kvp, kvn, zp, zn = ra.get(4, 4), ra.get(4, 4), ra.get(4, 4), ra.get(4, 4)
        PTp, PTn, Vb = ra.get(4), ra.get(4), ra.get(4)
        for t in range(4):
            acc = {1: ra.get(4), 2: ra.get(4)}
            self.gemm_tile(t, (1, 2), WB, acc, xf, self.vL16)
            st = self.stat_read(t)
            Pb = ra.get(4)
            self.fix_v(acc[2], cs[2], st, Vb + 2 * (t & 1))
            self.phi(acc[1], cs[1], st, sumsel, Pb)
            T = ra.get(8)
            p(mf16(v(T, 4), v(Pb, 2), v(ident, 2), '0'))
            p(mf16(v(T + 4, 4), v(Pb + 2, 2), v(ident, 2), '0'))
            for h in range(2):
                p('v_cvt_pk_bf16_f32 %s, %s, %s' % (v(PTp + 2 * (t & 1) + h), v(T + 2 * h), v(T + 2 * h + 1)))
                p('v_cvt_pk_bf16_f32 %s, %s, %s' % (v(PTn + 2 * (t & 1) + h), v(T + 4 + 2 * h), v(T + 4 + 2 * h + 1)))
            if t & 1:
                for (d, a, b) in ((kvp, PTp, Vb), (kvn, PTn, Vb), (zp, PTp, ones), (zn, PTn, ones)):
                    p(mf32(v(d, 4), v(a, 4), v(b, 4), '0' if t == 1 else v(d, 4)))
            ra.put(T, 8); ra.put(Pb, 4); self.stat_put(st)
            for r in acc.values(): ra.put(r, 4)
        ra.put(PTp, 4); ra.put(PTn, 4); ra.put(Vb, 4); ra.put(ident, 2)
        ra.put(cs[1], 4); ra.put(cs[2])
        self.prof('B%d_kv' % l)
        za = ra.get()
        p('s_lshl_b32 %s, %s, 2\ns_add_u32 %s, %s, %s\ns_lshl_b32 %s, %s, 2\ns_add_u32 %s, %s, %s' % (sT[0], sC, sT[0], sT[0], sW, sT[0], sT[0], sT[0], sT[0], sJ))
        p('s_mul_i32 %s, %s, 2304\ns_add_u32 %s, %s, %s\ns_add_u32 %s, %s, %d' % (sT[0], sT[0], sT[0], sT[0], sREG, sT[0], sT[0], R_BOX1 + inst * BOX1_INST))
        p('v_lshlrev_b32 %s, 5, %s' % (v(za), v(self.vG)))
        self.pub(['buffer_store_dwordx4 %s, %s, %s, %s offen' % (v(kvp, 4), v(self.vL16), sWS, sT[0]),
                  'buffer_store_dwordx4 %s, %s, %s, %s offen offset:1024' % (v(kvn, 4), v(self.vL16), sWS, sT[0]),
                  'buffer_store_dwordx4 %s, %s, %s, %s offen offset:2048' % (v(zp, 4), v(za), sWS, sT[0]),
                  'buffer_store_dwordx4 %s, %s, %s, %s offen offset:2064' % (v(zn, 4), v(za), sWS, sT[0])])
        p.wait_vm_all()
        self.barrier()
        for r in (kvp, kvn, zp, zn): ra.put(r, 4)
        ra.put(za)
        p('s_lshl_b32 %s, %s, 7\ns_add_u32 %s, %s, %s\ns_add_u32 %s, %s, %d' % (sT[8], sC, sT[8], sT[8], sREG, sT[8], sT[8], R_FLAGS1 + inst * 1024))
        p('s_lshl_b32 %s, %s, 2\ns_add_u32 %s, %s, %s' % (sT[0], sJ, sT[0], sT[0], sT[8]))
        self.flag_store(sT[0])
        if first:
            tra = self.tr_addr(L_S, 1024, sW)
            self.tr_part(tra, lambda s: WB(0, s))
            ra.put(tra)
            self.barrier()
        self.poll(sT[8], 4)
        x = ra.get(8, 4); z = ra.get(); a1, a2 = ra.get(), ra.get()
        p('s_lshl_b32 %s, %s, 2\ns_add_u32 %s, %s, %s\ns_mul_i32 %s, %s, %d' % (sT[0], sC, sT[0], sT[0], sJ, sT[0], sT[0], 4 * 2304))
        p('s_add_u32 %s, %s, %s\ns_add_u32 %s, %s, %d' % (sT[0], sT[0], sREG, sT[0], sT[0], R_BOX1 + inst * BOX1_INST))
        p('s_lshl_b32 %s, %s, 8\ns_add_u32 %s, %s, %s' % (sT[1], sW, sT[1], sT[1], sT[0]))
        p('s_lshl_b32 %s, %s, 5\ns_add_u32 %s, %s, %s' % (sT[2], sW, sT[2], sT[2], sT[0]))
        p('v_mul_u32_u24 %s, 2304, %s\nv_lshl_add_u32 %s, %s, 4, %s' % (v(a2), v(self.vG), v(a1), v(self.vI), v(a2)))
        p('v_and_b32 %s, 7, %s\nv_lshl_add_u32 %s, %s, 2, %s' % (v(z), v(self.vI), v(a2), v(z), v(a2)))
        p('buffer_load_dwordx4 %s, %s, %s, %s offen' % (v(x, 4), v(a1), sWS, sT[1]))
        p('buffer_load_dwordx4 %s, %s, %s, %s offen offset:1024' % (v(x + 4, 4), v(a1), sWS, sT[1]))
        p('buffer_load_dword %s, %s, %s, %s offen offset:2048' % (v(z), v(a2), sWS, sT[2]))
        for k in range(4):
            p('v_permlane32_swap_b32 %s, %s' % (v(x + k), v(x + 4 + k)))
        for k in range(4):
            p('v_add_f32 %s, %s, %s' % (v(x + k), v(x + k), v(x + 4 + k)))
        for k in range(2):
            p('v_permlane16_swap_b32 %s, %s' % (v(x + k), v(x + 2 + k)))
        for k in range(2):
            p('v_add_f32 %s, %s, %s' % (v(x + k), v(x + k), v(x + 2 + k)))
        p('v_cvt_pk_bf16_f32 %s, %s, %s' % (v(x), v(x), v(x + 1)))
        for sw in ('32', '16'):
            p('v_mov_b32 %s, %s' % (v(x + 4), v(z)))
            p('v_permlane%s_swap_b32 %s, %s' % (sw, v(z), v(x + 4)))
            p('v_add_f32 %s, %s, %s' % (v(z), v(z), v(x + 4)))
        p('s_lshl_b32 %s, %s, 2\ns_add_u32 %s, %s, %s\ns_lshl_b32 %s, %s, 3\ns_add_u32 %s, %s, %s' % (sT[0], sC, sT[0], sT[0], sJ, sT[0], sT[0], sT[0], sT[0], sXS))
        p('s_mul_i32 %s, %s, 1280\ns_add_u32 %s, %s, %d' % (sT[0], sT[0], sT[0], sT[0], WS_BOX2 + inst * BOX2_INST))
        p('s_lshl_b32 %s, %s, 8\ns_add_u32 %s, %s, %s' % (sT[1], sW, sT[1], sT[1], sT[0]))
        p('s_lshl_b32 %s, %s, 5\ns_add_u32 %s, %s, %s' % (sT[2], sW, sT[2], sT[2], sT[0]))
        p('v_lshlrev_b32 %s, 2, %s\nv_lshl_add_u32 %s, %s, 4, %s' % (v(a1), v(self.vG), v(a1), v(self.vI), v(a1)))
        p('v_and_b32 %s, 7, %s\nv_lshlrev_b32 %s, 2, %s' % (v(a2), v(self.vI), v(a2), v(a2)))
        p('buffer_store_dword %s, %s, %s, %s offen sc1' % (v(x), v(a1), sWS, sT[1]))
        p('buffer_store_dword %s, %s, %s, %s offen offset:1024 sc1' % (v(z), v(a2), sWS, sT[2]))
        ra.put(x, 8); ra.put(z); ra.put(a1); ra.put(a2)
        self.prof('B%d_s1' % l)
        if first:
            self.dma_part(sWOB, self.vWS1, 1024, L_S, 0, False, 'wo')
            self.colsum((0,), WB, ones, 1)
            p.wait_lds()
        cs = self.cs_load((0,), 1)
        phiq = ra.get(16, 4)
        for t in range(4):
            acc = {0: ra.get(4)}
            self.gemm_tile(t, (0,), WB, acc, xf, self.vL16)
            st = self.stat_read(t, need_r=False)
            self.phi(acc[0], cs[0], st, sumsel, phiq + 4 * t)
            self.stat_put(st); ra.put(acc[0], 4)
        for r in xf: ra.put(r, 4)
        ra.put(cs[0], 4); ra.put(sumsel, 4); ra.put(ones, 4)
        self.stat_free()
        self.prof('B%d_q' % l)
        pk = ra.get(32, 4); zz = ra.get(4, 4); sm = ra.get(8, 4); a2 = ra.get(); lo, hi = ra.get(), ra.get(); chk = ra.get()
        p('s_lshl_b32 %s, %s, 2\ns_add_u32 %s, %s, %s\ns_mul_i32 %s, %s, %d\ns_add_u32 %s, %s, %d' % (sT[0], sC, sT[0], sT[0], sW, sT[0], sT[0], 8 * 1280, sT[0], sT[0], WS_BOX2 + inst * BOX2_INST))
        p('v_and_b32 %s, 7, %s\nv_mul_u32_u24 %s, 1280, %s' % (v(a2), v(self.vI), v(a2), v(a2)))
        p('v_lshl_add_u32 %s, %s, 5, %s' % (v(a2), v(self.vG), v(a2)))
        p('v_lshrrev_b32 %s, 3, %s\nv_lshl_add_u32 %s, %s, 4, %s' % (v(lo), v(self.vI), v(a2), v(lo), v(a2)))
        p('v_mov_b32 %s, 0x3f80\nv_mov_b32 %s, 0x3f800000' % (v(lo), v(hi)))
        p('s_add_u32 %s, %s, %d\ns_add_u32 %s, %s, %d' % (sT[1], sT[0], 3 * 1280, sT[2], sT[0], 6 * 1280))
        p('s_mov_b32 %s, 0x4000' % sT[9])
        lp, le = self.lab('s2'), self.lab('s2d')
        p.wait_vm_all()
        p.fence()
        p('%s:' % lp)
        for q in range(8):
            p('buffer_load_dwordx4 %s, %s, %s, %s offen offset:%d sc1' % (v(pk + 4 * q, 4), v(self.vL16), sWS, sT[q // 3], (q % 3) * 1280))
        p('buffer_load_dwordx4 %s, %s, %s, %s offen offset:1024 sc1' % (v(zz, 4), v(a2), sWS, sT[0]))
        for q in range(8):
            for k in range(4):
                for h, sel in ((0, lo), (1, hi)):
                    d = sm + 2 * k + h
                    p('v_dot2_f32_bf16 %s, %s, %s, %s' % (v(d), v(pk + 4 * q + k), v(sel), '0' if q == 0 else v(d)))
        for ctrl in ('quad_perm:[1,0,3,2]', 'quad_perm:[2,3,0,1]', 'row_half_mirror'):
            for k in range(4):
                p('v_add_f32_dpp %s, %s, %s %s row_mask:0xf bank_mask:0xf' % (v(zz + k), v(zz + k), v(zz + k), ctrl))
        p('v_add_f32 %s, %s, %s' % (v(chk), v(sm), v(zz)))
        for k in range(1, 4): p('v_add_f32 %s, %s, %s' % (v(chk), v(chk), v(zz + k)))
        for k in (2, 4, 6): p('v_add_f32 %s, %s, %s' % (v(chk), v(chk), v(sm + k)))
        p('v_cmp_u_f32 vcc, %s, %s' % (v(chk), v(chk)))
        p('s_cbranch_vccz %s' % le)
        p('s_sub_u32 %s, %s, 1\ns_cmp_gt_i32 %s, 0\ns_cbranch_scc1 %s' % (sT[9], sT[9], sT[9], lp))
        p('%s:' % le)
        p.fence()
        self.prof('B%d_s2' % l)
        kvf = pk; zf = pk + 4
        for k in range(4): p('v_cvt_pk_bf16_f32 %s, %s, %s' % (v(kvf + k), v(sm + 2 * k), v(sm + 2 * k + 1)))
        for k in range(2): p('v_cvt_pk_bf16_f32 %s, %s, %s' % (v(zz + k), v(zz + 2 * k), v(zz + 2 * k + 1)))
        for k in range(2):
            p('v_mov_b32_dpp %s, %s row_newbcast:0 row_mask:0xf bank_mask:0xf' % (v(zf + k), v(zz + k)))
            p('v_mov_b32_dpp %s, %s row_newbcast:8 row_mask:0xf bank_mask:0xf' % (v(zf + 2 + k), v(zz + k)))
        ob = sm
        for t in range(4):
            num, den = pk + 8 + 4 * (t & 1), pk + 16 + 4 * (t & 1)
            p(mf32(v(num, 4), v(kvf, 4), v(phiq + 4 * t, 4), '0'))
            p(mf32(v(den, 4), v(zf, 4), v(phiq + 4 * t, 4), '0'))
            p('v_add_f32 %s, %s, %s' % (v(den), f2h(1e-6), v(den)))
            p('v_rcp_f32 %s, %s' % (v(den), v(den)))
            for r in range(4): p('v_mul_f32 %s, %s, %s' % (v(num + r), v(den), v(num + r)))
            p('v_cvt_pk_bf16_f32 %s, %s, %s' % (v(ob + 2 * t), v(num), v(num + 1)))
            p('v_cvt_pk_bf16_f32 %s, %s, %s' % (v(ob + 2 * t + 1), v(num + 2), v(num + 3)))
        self.o_publish(l, ob)
        ra.put(pk, 32); ra.put(zz, 4); ra.put(sm, 8); ra.put(a2); ra.put(lo); ra.put(hi); ra.put(chk); ra.put(phiq, 16)

    def build(self):
        p, ra = self.p, self.ra
        self.prologue()
        self.phase1()
        tra = self.tr_addr(L_A, 1024, sW)
        self.tr_part(tra, lambda s: WB(1, s))
        ra.put(tra)
        self.barrier()
        ra.shrink(128, 256)
        self.wo_phase(0, after_issue=lambda: self.dma_part(sWB, self.vWS3, 3072, L_A, 2048, True, 'wb'))
        self.layer_B(1)
        self.wo_phase(1)
        self.layer_A2()
        self.wo_phase(2)
        self.layer_B(3)
        self.wo_phase(3)
        l = self.lab('non')
        t = ra.get(2)
        p('v_mov_b32 %s, %s\nv_mov_b32 %s, 0' % (v(t), sTAG, v(t + 1)))
        p('s_or_b32 %s, s2, %s\ns_cmp_lg_u32 %s, 0\ns_cbranch_scc1 %s' % (sT[0], sW, sT[0], l))
        p('s_mov_b64 exec, 1')
        p('buffer_store_dword %s, %s, %s, 0 offen offset:%d' % (v(t), v(t + 1), sWS, WS_NONCE), cond=True)
        p('s_mov_b64 exec, -1\n%s:' % l)
        if OPT['prof']:
            self.prof('end')
            p.fence()
            p('s_memrealtime s[80:81]\ns_waitcnt lgkmcnt(0)')
            p('v_writelane_b32 %s, s80, 61\nv_writelane_b32 %s, %s, 62\nv_writelane_b32 %s, %s, 63' % (v(self.vPROF), v(self.vPROF), sBUD, v(self.vPROF), sFAST))
            p('s_lshl_b32 %s, s2, 2\ns_add_u32 %s, %s, %s\ns_lshl_b32 %s, %s, 8\ns_add_u32 %s, %s, %d' % (sT[0], sT[0], sT[0], sW, sT[0], sT[0], sT[0], sT[0], WS_PROF))
            p('v_lshlrev_b32 %s, 2, %s' % (v(t), v(self.vLANE)))
            p('buffer_store_dword %s, %s, %s, %s offen' % (v(self.vPROF), v(t), sWS, sT[0]))
        p('L_exit:')
        return finalize(p.ins)

PROF_NAMES = []
HEADER = open('cdna_kernels/%s.s.ref' % NAME).read().split('; Override launch')[0]

def generate(**opt):
    OPT.update(opt)
    del PROF_NAMES[:]
    ins = K().build()
    body = text_of(ins)
    return HEADER + """; Generated by a hand-written Python generator (persistent fused kernel, one workgroup per CU).
; @launch grid=(256,1,1) block=(256,1,1) lds=%d
.amdgcn_target "amdgcn-amd-amdhsa--gfx950"
.text
.globl %s_kernel
.p2align 8
.type %s_kernel,@function
%s_kernel:
%s
    s_endpgm
.section .rodata,"a"
.p2align 6
.amdhsa_kernel %s_kernel
  .amdhsa_next_free_vgpr 512
  .amdhsa_next_free_sgpr 102
  .amdhsa_accum_offset 256
  .amdhsa_group_segment_fixed_size 0
  .amdhsa_kernarg_size 80
  .amdhsa_user_sgpr_count 2
  .amdhsa_user_sgpr_kernarg_segment_ptr 1
  .amdhsa_system_sgpr_workgroup_id_x 1
.end_amdhsa_kernel
""" % (LDS_BYTES, NAME, NAME, NAME, body, NAME)

if __name__ == '__main__':
    out = sys.argv[1] if len(sys.argv) > 1 else 'cdna_kernels/%s.s' % NAME
    opts = {a.split('=')[0]: eval(a.split('=')[1]) for a in sys.argv[2:]}
    open(out, 'w').write(generate(**opts))
    print('wrote', out)
```

```python
from hx import *
N = 40
def kern(kind, nact):
    s = f"""
s_load_dwordx4 s[4:7], s[0:1], 0
v_and_b32 v1, 63, v0
v_lshrrev_b32 v2, 6, v0
s_nop 0
v_readfirstlane_b32 s30, v2
s_waitcnt lgkmcnt(0)
s_mov_b32 s12, s6
s_mov_b32 s13, s7
s_mov_b32 s14, {64<<20}
s_mov_b32 s15, 0x20000
s_lshl_b32 s36, s2, 2
s_add_u32 s36, s36, s30
s_mul_i32 s36, s36, {N*(8192 if kind == 'narrow' else 1024)}
v_lshlrev_b32 v3, {7 if kind == 'narrow' else 4}, v1
v_add_u32 v3, s36, v3
s_lshl_b32 m0, s30, 10
v_mov_b32 v100, 0
s_cmp_ge_u32 s30, {nact}
s_cbranch_scc1 L_end_%u
s_memtime s[20:21]
s_waitcnt lgkmcnt(0)
"""
    for k in range(N):
        s += f's_mov_b32 s39, {k*(8192 if kind == "narrow" else 1024)}\n'
        if kind == 'dma': s += 'buffer_load_dwordx4 v3, s[12:15], s39 offen lds\n'
        elif kind == 'ld': s += f'buffer_load_dwordx4 v[{8+4*(k%20)}:{11+4*(k%20)}], v3, s[12:15], s39 offen\n'
        elif kind == 'narrow': s += f'buffer_load_dword v{8+k}, v3, s[12:15], s39 offen\n'
        elif kind == 'st': s += f'buffer_store_dwordx4 v[8:11], v3, s[12:15], s39 offen sc1\n'
        elif kind == 'stp': s += f'buffer_store_dwordx4 v[8:11], v3, s[12:15], s39 offen\n'
        s += f's_memtime s[22:23]\ns_waitcnt lgkmcnt(0)\ns_sub_u32 s22, s22, s20\nv_writelane_b32 v100, s22, {k}\n'
    s += f"""s_waitcnt vmcnt(0)
s_memtime s[22:23]
s_waitcnt lgkmcnt(0)
s_sub_u32 s22, s22, s20
v_writelane_b32 v100, s22, 63
s_lshl_b32 s3, s2, 10
s_lshl_b32 s36, s30, 8
s_add_u32 s3, s3, s36
v_lshlrev_b32 v6, 2, v1
v_add_u32 v6, s3, v6
global_store_dword v6, v100, s[4:5]
L_end_%u:
s_waitcnt vmcnt(0)
"""
    return s
cfgs = [('dma', 4), ('dma', 1), ('ld', 4), ('ld', 1), ('narrow', 4), ('narrow', 1), ('st', 4), ('st', 1), ('stp', 4)]
ks = [(f'k{n}', kern(*c).replace('%u', str(n)), 256, 256) for n, c in enumerate(cfgs)]
co = build(wrap(ks, 16), 'mb16')
if os.path.exists('/dev/kfd'):
    m = Mod(co)
    out = DeviceBuffer(1 << 20); x = DeviceBuffer(64 << 20); big = DeviceBuffer(512 << 20)
    for n, c in enumerate(cfgs):
        for it in range(2):
            memset(x, 1); memset(big, it); sync()
            m.launch(f'k{n}', 32, 256, [out.ptr, x.ptr], lds=65536); sync()
        r = out.to_numpy(np.uint32, (32, 4, 64))
        print(c, ' '.join(str(v) for v in r[5, 0, :N]), '| all', r[5, 0, 63])
```
